```python
import torch

def _softmax(x, axis=-1):
    return torch.softmax(x, dim=axis)
def _gelu(x):
    return torch.nn.functional.gelu(x, approximate="tanh")
def _silu(x):
    return torch.nn.functional.silu(x)
def _sigmoid(x):
    return torch.sigmoid(x)
def _layernorm(x, axis=-1, eps=1e-5):
    m = x.mean(dim=axis, keepdim=True)
    v = x.var(dim=axis, keepdim=True, unbiased=False)
    return (x - m) / torch.sqrt(v + eps)
def _scatter_add(tgt, idx, src, axis=0):
    return tgt.clone().index_add_(axis, idx, src)
def _segment_sum(src, seg, n):
    out = torch.zeros((n,) + src.shape[1:], dtype=src.dtype)
    return out.index_add_(0, seg, src)
def _pad(x, pw):
    flat = tuple(v for pair in reversed(pw) for v in pair)
    return torch.nn.functional.pad(x, flat)

kernel_name = 'gated_mix__sliding_block_cached__dense_activation_relu__decode'

def setup_inputs():

    _w = (lambda a: (lambda t: t.to(torch.bfloat16) if t.is_floating_point() else t)(torch.as_tensor(a)))
    def _A_setup():
        B, Sq, D = 4, 1, 448
        Hq, Hkv, Sk, Dh = 16, 8, 8192, 256
        assert Hq % Hkv == 0, (Hq, Hkv)
        return {
            "x": _w((lambda *s: torch.randn(*s, dtype=torch.bfloat16) * 0.05)(B, Sq, D)),
            "k_cache": _w((lambda *s: torch.randn(*s, dtype=torch.bfloat16) * 6.4)(B, Hkv, Sk, Dh)),
            "v_cache": _w((lambda *s: torch.randn(*s, dtype=torch.bfloat16) * 0.4)(B, Hkv, Sk, Dh)),
            "wq": _w((lambda *s: torch.randn(*s, dtype=torch.bfloat16) * 6.4)(D, Hq * Dh) * (D ** -0.5)),
            "wo": _w((lambda *s: torch.randn(*s, dtype=torch.bfloat16) * 0.4)(Hq * Dh, D) * ((Hq * Dh) ** -0.5)),
        }
    _A_in = _A_setup()

    def _B_setup():
        B, S, D, Dff = 4, 1, 448, 1792
        return {
            "x": _w((lambda *s: torch.randn(*s, dtype=torch.bfloat16) * 0.05)(B, S, D)),
            "w1": _w((lambda *s: torch.randn(*s, dtype=torch.bfloat16) * 0.05)(D, Dff)),
            "w2": _w((lambda *s: torch.randn(*s, dtype=torch.bfloat16) * 0.05)(Dff, D)),
        }
    _B_in = _B_setup()

    return {
        "A_x": _A_in["x"],
        "A_k_cache": _A_in["k_cache"],
        "A_v_cache": _A_in["v_cache"],
        "A_wq": _A_in["wq"],
        "A_wo": _A_in["wo"],
        "B_x": _B_in["x"],
        "B_w1": _B_in["w1"],
        "B_w2": _B_in["w2"],
        "gate_w": _w((lambda *s: torch.randn(*s, dtype=torch.bfloat16) * 0.05)(448) * 16.0),
    }

def reference(A_x, A_k_cache, A_v_cache, A_wq, A_wo, B_x, B_w1, B_w2, gate_w):
    def _A_ref(x, k_cache, v_cache, wq, wo):
        B, Sq, D = x.shape
        Hq, Dh = 16, 256
        Hkv, Sk = k_cache.shape[1], k_cache.shape[2]
        W = min(4096, max(256, Sk // 4))
        rep = Hq // Hkv
        q = (lambda x, *d: x.permute(*d))((x @ wq).reshape(B, Sq, Hq, Dh), 0, 2, 1, 3)
        k = (lambda x, n, axis: torch.repeat_interleave(x, n, dim=axis))(k_cache[:, :, Sk - W:, :], rep, axis=1)
        v = (lambda x, n, axis: torch.repeat_interleave(x, n, dim=axis))(v_cache[:, :, Sk - W:, :], rep, axis=1)
        scores = torch.einsum("bhqd,bhkd->bhqk", q, k) * (Dh ** -0.5)
        p = _softmax(scores, axis=-1)
        o = torch.einsum("bhqk,bhkd->bhqd", p, v)
        return (lambda x, *d: x.permute(*d))(o, 0, 2, 1, 3).reshape(B, Sq, Hq * Dh) @ wo

    def _B_ref(x, w1, w2):
        h = torch.einsum("bsd,df->bsf", x, w1)
        zero = torch.zeros_like(h)
        h = torch.maximum(h, zero)
        return torch.einsum("bsf,fd->bsd", h, w2)

    x = A_x
    g = _sigmoid((x * gate_w).sum(-1, keepdims=True))
    a = _A_ref(x, A_k_cache, A_v_cache, A_wq, A_wo)
    b = _B_ref(x, B_w1, B_w2)
    return g * a + (1 - g) * b
```

```python
import sys, subprocess
NAME='gated_mix__sliding_block_cached__dense_activation_relu__decode'
HDR=open('cdna_kernels/'+NAME+'.s.ref').read().split('; Override launch')[0]

def gen(debug=False, W=24, ntkv=True, ntw=True, rotmul=4, opts=()):
    L=[]; A=L.append
    def AA(s):
        for x in s.strip().split('\n'): A('    '+x.strip())
    WO_STG=45056
    WQ_STG=131072; W1_STG=WQ_STG+14336
    SM=W1_STG+14336
    QB=0; PB=1056; MW=2112; LW=2176; MG=2240; FS=2248; G1=2256; HB=2272; HZ=2336
    F_PROG=2368; F_STG=2372; F_QH=2376; F_S1=2380; F_S2=2384; F_SC=2388; F_KC=2400
    LDS=163840
    QBUF=0x10000; HBUF=0x20000; SBUF=0x28000; OBUF=0x30000; FBUF=0x100000; WSN=0x200000
    NK=' nt' if ntkv else ''; NW=' nt' if ntw else ''
    cnt=[0]
    def lab(p): cnt[0]+=1; return f'L_{p}{cnt[0]}'
    def STAMP(k):
        if debug: A(f'    s_memrealtime s[{68+2*k}:{69+2*k}]')
    def srd(d,p,n): AA(f's_mov_b32 s{d}, s{p}\ns_mov_b32 s{d+1}, s{p+1}\ns_mov_b32 s{d+2}, {n}\ns_mov_b32 s{d+3}, 0x20000')
    def spin(off,thr,vf,vt,sleep=0):
        l=lab('sp')
        A(l+':')
        AA(f'ds_read_b32 {vt}, {vf} offset:{off}\ns_sub_u32 s43, s43, 1\ns_cbranch_scc1 L_end')
        if sleep: AA(f's_sleep {sleep}')
        AA(f's_waitcnt lgkmcnt(0)\nv_readfirstlane_b32 s42, {vt}\ns_cmp_ge_u32 s42, {thr}\ns_cbranch_scc0 {l}')
    def ldsadd(off,vf,vone):
        AA(f's_waitcnt lgkmcnt(0)\ns_mov_b64 exec, 1\nds_add_u32 {vf}, {vone} offset:{off}\ns_mov_b64 exec, -1')
    def dpp2(op,a,b,rots):
        for r in rots:
            AA(f's_nop 0\n{op}_dpp {a}, {a}, {a} row_ror:{r} row_mask:0xf bank_mask:0xf\n{op}_dpp {b}, {b}, {b} row_ror:{r} row_mask:0xf bank_mask:0xf')
    def dump_stamps(n):
        if not debug: return
        AA(f'''s_waitcnt lgkmcnt(0)
        s_mul_i32 s60, s2, 10
        s_add_u32 s60, s60, s3
        s_lshl_b32 s60, s60, 7
        s_add_u32 s60, s60, 0x10000000
        s_add_u32 s60, s38, s60
        s_addc_u32 s61, s39, 0
        s_mov_b64 exec, -1
        v_mov_b32 v1, 0''')
        for k in range(16):
            AA(f'v_mov_b32 v2, s{68+2*k}\nv_mov_b32 v3, s{69+2*k}\nglobal_store_dwordx2 v1, v[2:3], s[60:61] offset:{8*k}')
    A(HDR+f'; @launch grid=(256,1,1) block=(640,1,1) lds={LDS}')
    A(f'.amdgcn_target "amdgcn-amd-amdhsa--gfx950"\n.text\n.globl {NAME}_kernel\n.p2align 8\n.type {NAME}_kernel,@function\n{NAME}_kernel:')
    if debug:
        for k in range(1,16): AA(f's_mov_b64 s[{68+2*k}:{69+2*k}], 0')
    STAMP(0)
    AA(f'''s_cmp_ge_u32 s2, 256
    s_cbranch_scc1 L_exit
    s_load_dwordx16 s[16:31], s[0:1], 0
    s_load_dwordx8 s[32:39], s[0:1], 64
    v_lshrrev_b32 v1, 6, v0
    v_and_b32 v0, 63, v0
    s_and_b32 s4, s2, 7
    v_readfirstlane_b32 s3, v1
    s_lshr_b32 s5, s2, 3
    s_and_b32 s6, s5, 3
    s_lshr_b32 s7, s5, 2
    s_mov_b32 s43, 0x400000
    v_mov_b32 v2, {SM}
    s_cmp_eq_u32 s3, 1
    s_cbranch_scc1 L_aux
    s_cmp_gt_u32 s3, 1
    s_cbranch_scc1 L_comp''')
    AA(f'''s_setprio 3
    v_lshlrev_b32 v1, 4, v0
    v_lshrrev_b32 v3, 5, v0
    v_lshlrev_b32 v4, 4, v3
    v_xor_b32 v8, v1, v4
    v_lshlrev_b32 v4, 5, v3
    v_xor_b32 v16, v1, v4''')
    for i in range(1,8): AA(f'v_xor_b32 v{8+i}, {i<<5}, v8')
    for i in range(1,4): AA(f'v_xor_b32 v{16+i}, {i<<6}, v16')
    AA(f'''s_lshl_b32 s60, s4, 9
    s_lshl_b32 s61, s7, 5
    s_add_u32 s60, s60, s61
    s_mul_i32 s60, s60, 896
    s_lshl_b32 s61, s4, 3
    s_add_u32 s61, s61, s7
    s_mul_i32 s61, s61, 25088
    s_lshl_b32 s62, s6, 3
    s_add_u32 s62, s62, s4
    s_lshl_b32 s62, s62, 22
    s_lshl_b32 s63, s7, 17
    s_add_u32 s62, s62, s63
    s_add_u32 s62, s62, 0x300000
    s_mul_i32 s63, s5, {rotmul*1024}
    s_and_b32 s63, s63, 0x1ffff
    s_mov_b32 m0, {WO_STG}
    s_waitcnt lgkmcnt(0)''')
    srd(48,24,3670016); srd(52,30,1605632); srd(56,18,134217728); srd(8,20,134217728)
    AA(f's_mov_b32 s64, {-W}\ns_mov_b32 s65, 0')
    def prog():
        AA(f's_waitcnt vmcnt({W})\ns_add_u32 s64, s64, 4\nv_mov_b32 v3, s64\nds_write_b32 v2, v3 offset:{F_PROG}')
    first=True
    for blk,(sr,so) in enumerate(((48,'s60'),(48,'s60'),(52,'s61'))):
        l=lab('ld')
        if blk==1: AA(f's_add_u32 s60, s60, {256*896-28672}')
        if blk==0:
            n0=min(W,28)//4
            for g in range(n0):
                for k in range(4): AA(f'buffer_load_dwordx4 v1, s[{sr}:{sr+3}], {so} offen offset:{k*1024}{NW} lds')
                AA(f's_add_u32 {so}, {so}, 4096\ns_add_u32 m0, m0, 4096\ns_add_u32 s64, s64, 4')
            STAMP(1)
            AA('s_barrier')
            rem=7-n0
        else: rem=7
        if rem>0:
            AA(f's_mov_b32 s65, {rem}')
            A(l+':')
            for k in range(4): AA(f'buffer_load_dwordx4 v1, s[{sr}:{sr+3}], {so} offen offset:{k*1024}{NW} lds')
            AA(f's_add_u32 {so}, {so}, 4096\ns_add_u32 m0, m0, 4096')
            AA(f's_waitcnt vmcnt({W})\ns_add_u32 s64, s64, 4\ns_max_i32 s66, s64, 0\nv_mov_b32 v3, s66\nds_write_b32 v2, v3 offset:{F_PROG}')
            AA(f's_sub_u32 s65, s65, 1\ns_cmp_lg_u32 s65, 0\ns_cbranch_scc1 {l}')
    STAMP(2)
    def kvloop(sr,vb,per,tag,check):
        AA(f's_mov_b32 m0, 0\ns_mov_b32 s65, 0\ns_mov_b32 s67, s63')
        l=lab(tag); A(l+':')
        check()
        for hgrp in range(2):
            AA(f's_add_u32 s66, s62, s67\ns_add_u32 s67, s67, 4096\ns_and_b32 s67, s67, 0x1ffff')
            for k in range(4): AA(f'buffer_load_dwordx4 v{vb+(hgrp*4+k)%per}, s[{sr}:{sr+3}], s66 offen offset:{k*1024}{NK} lds')
            AA('s_add_u32 m0, m0, 4096')
            prog()
        AA(f's_add_u32 s65, s65, 1\ns_cmp_lt_u32 s65, 16\ns_cbranch_scc1 {l}')
    def kcheck():
        l=lab('kc')
        AA(f's_cmp_lg_u32 s65, 5\ns_cbranch_scc1 {l}')
        spin(F_STG,7,'v2','v4')
        A(l+':')
    def vcheck():
        l=lab('vc')
        AA(f's_bitcmp1_b32 s65, 0\ns_cbranch_scc1 {l}\ns_lshl_b32 s66, s65, 1\nv_add_u32 v5, s66, v2')
        spin(F_KC,1,'v5','v4')
        A(l+':')
    kvloop(56,8,8,'k',kcheck)
    STAMP(3)
    kvloop(8,16,4,'v',vcheck)
    STAMP(4)
    w=W
    while w>0:
        w-=4
        AA(f's_waitcnt vmcnt({w})\ns_add_u32 s64, s64, 4\nv_mov_b32 v3, s64\nds_write_b32 v2, v3 offset:{F_PROG}')
    STAMP(5)
    AA('s_branch L_end')
    A('L_aux:')
    AA(f'''s_setprio 2
    v_and_b32 v3, 3, v0
    v_lshrrev_b32 v4, 4, v0
    v_mul_u32_u24 v5, 896, v3
    v_lshl_add_u32 v5, v4, 4, v5
    v_lshrrev_b32 v6, 1, v0
    v_and_b32 v7, 1, v0
    v_lshlrev_b32 v7, 4, v7
    v_lshl_add_u32 v64, v6, 13, v7
    v_mul_u32_u24 v65, 3584, v6
    v_add_u32 v65, v65, v7
    v_lshlrev_b32 v66, 4, v0
    s_lshl_b32 s60, s4, 10
    s_lshl_b32 s61, s5, 5
    s_add_u32 s60, s60, s61
    s_lshl_b32 s61, s2, 5
    s_mul_i32 s62, s6, 896
    s_mov_b32 m0, {WQ_STG}
    s_waitcnt lgkmcnt(0)
    s_load_dwordx2 s[40:41], s[38:39], 0''')
    srd(48,22,3670016); srd(52,16,3584); srd(56,28,1605632); srd(8,32,896); srd(44,38,WSN)
    for m in range(14):
        AA(f'buffer_load_dwordx4 v64, s[48:51], s60 offen{NW} lds\ns_add_u32 m0, m0, 1024\ns_add_u32 s60, s60, {32*8192}')
    for m in range(14):
        AA(f'buffer_load_dwordx4 v[{8+4*m}:{11+4*m}], v5, s[52:55], 0 offen offset:{64*m}')
    lq=lab('now1')
    AA(f's_cmp_ge_u32 s2, 112\ns_cbranch_scc1 {lq}')
    for m in range(14):
        AA(f'buffer_load_dwordx4 v65, s[56:59], s61 offen{NW} lds\ns_add_u32 m0, m0, 1024\ns_add_u32 s61, s61, {32*3584}')
    A(lq+':')
    AA(f'''buffer_load_dwordx4 v[68:71], v66, s[52:55], s62 offen
    buffer_load_dwordx4 v[72:75], v66, s[8:11], 0 offen
    v_and_b32 v6, 15, v0
    v_lshlrev_b32 v6, 3, v6
    v_lshl_add_u32 v6, v4, 8, v6
    v_add_u32 v6, {WQ_STG}, v6
    v_lshlrev_b32 v7, 14, v3
    v_lshl_add_u32 v7, v4, 4, v7
    v_lshlrev_b32 v67, 13, v3
    v_lshl_add_u32 v67, v4, 4, v67
    s_lshl_b32 s60, s4, 11
    s_lshl_b32 s61, s5, 6
    s_add_u32 s60, s60, s61
    s_add_u32 s60, s60, {QBUF}
    s_lshl_b32 s61, s2, 6
    s_add_u32 s61, s61, {HBUF}
    s_waitcnt lgkmcnt(0)
    s_add_u32 s40, s40, 1
    s_addc_u32 s41, s41, 0''')
    STAMP(1)
    AA('s_barrier')
    def proj(stg,relu,voff,soff,wait):
        AA(wait)
        for m in range(14):
            AA(f'ds_read_b64_tr_b16 v[{80+4*m}:{81+4*m}], v6 offset:{stg+m*1024}\nds_read_b64_tr_b16 v[{82+4*m}:{83+4*m}], v6 offset:{stg+m*1024+128}')
        for m in range(14):
            if m in (0,4,8,11): AA(f's_waitcnt lgkmcnt({ {0:15,4:12,8:6,11:0}[m] })' if m else 's_waitcnt lgkmcnt(15)')
            if m==0: AA('s_waitcnt lgkmcnt(15)')
            c='0' if m==0 else 'v[76:79]'
            AA(f'v_mfma_f32_16x16x32_bf16 v[76:79], v[{80+4*m}:{83+4*m}], v[{8+4*m}:{11+4*m}], {c}')
        AA('v_mov_b32 v138, s40\nv_mov_b32 v139, s41\ns_nop 6')
        if relu: AA('v_max_f32 v76, 0, v76\nv_max_f32 v77, 0, v77\nv_max_f32 v78, 0, v78\nv_max_f32 v79, 0, v79')
        AA(f'''v_cvt_pk_bf16_f32 v136, v76, v77
        v_cvt_pk_bf16_f32 v137, v78, v79
        s_mov_b32 exec_lo, 0x000f000f
        s_mov_b32 exec_hi, 0x000f000f
        buffer_store_dwordx4 v[136:139], {voff}, s[44:47], {soff} offen sc1
        s_mov_b64 exec, -1''')
    lw=lab('qw'); lw2=lab('qw')
    AA(f's_cmp_ge_u32 s2, 112\ns_cbranch_scc1 {lw}\ns_waitcnt vmcnt(16)\ns_branch {lw2}')
    A(lw+':'); AA('s_waitcnt vmcnt(2)'); A(lw2+':')
    STAMP(2)
    proj(0,False,'v7','s60','')
    STAMP(3)
    l1=lab('noffn')
    AA(f's_cmp_ge_u32 s2, 112\ns_cbranch_scc1 {l1}')
    proj(14336,True,'v67','s61','s_waitcnt vmcnt(3)')
    A(l1+':')
    AA('s_waitcnt vmcnt(1)')
    AA('v_mov_b32 v80, 0')
    for i in range(4):
        AA(f'''v_lshlrev_b32 v81, 16, v{68+i}
        v_and_b32 v82, 0xffff0000, v{68+i}
        v_lshlrev_b32 v83, 16, v{72+i}
        v_and_b32 v84, 0xffff0000, v{72+i}
        v_mul_f32 v81, v81, v83
        v_mul_f32 v82, v82, v84
        v_cvt_pk_bf16_f32 v81, v81, v82
        v_lshlrev_b32 v82, 16, v81
        v_and_b32 v81, 0xffff0000, v81
        v_add_f32 v80, v80, v82
        v_add_f32 v80, v80, v81''')
    AA('v_cmp_gt_u32 vcc, 56, v0\ns_nop 1\nv_cndmask_b32 v80, 0, v80, vcc')
    for r in (8,4,2,1): AA(f's_nop 1\nv_add_f32_dpp v80, v80, v80 row_ror:{r} row_mask:0xf bank_mask:0xf')
    AA(f'''v_mov_b32 v81, v80
    s_nop 1
    v_permlane16_swap_b32 v80, v81
    v_add_f32 v80, v80, v81
    v_mov_b32 v81, v80
    s_nop 1
    v_permlane32_swap_b32 v80, v81
    v_add_f32 v80, v80, v81
    v_cvt_pk_bf16_f32 v80, v80, v80
    v_lshlrev_b32 v80, 16, v80
    v_mul_f32 v80, 0xbfb8aa3b, v80
    v_exp_f32 v80, v80
    s_nop 0
    v_add_f32 v80, 1.0, v80
    v_rcp_f32 v80, v80
    s_nop 0
    v_cvt_pk_bf16_f32 v80, v80, v80
    v_lshlrev_b32 v80, 16, v80
    v_sub_f32 v81, 1.0, v80
    v_cvt_pk_bf16_f32 v81, v81, v81
    v_lshlrev_b32 v81, 16, v81
    ds_write_b32 v2, v81 offset:{G1}
    s_lshl_b32 s60, s6, 3
    s_add_u32 s60, s60, s4
    s_lshl_b32 s62, s60, 8
    s_add_u32 s62, s62, {SBUF}
    s_lshl_b32 s60, s60, 11
    s_add_u32 s60, s60, {QBUF}
    s_lshl_b32 s61, s4, 3
    s_add_u32 s61, s61, s7
    s_mul_i32 s61, s61, 112
    s_lshl_b32 s63, s6, 13
    s_add_u32 s61, s61, s63
    s_add_u32 s61, s61, {HBUF}
    v_min_u32 v82, 6, v0
    v_lshlrev_b32 v83, 4, v82
    v_lshl_add_u32 v82, v82, 3, v2
    v_lshl_add_u32 v84, v0, 3, v2''')
    STAMP(4)
    lp=lab('pq'); A(lp+':')
    AA(f'''buffer_load_dwordx4 v[88:91], v66, s[44:47], s60 offen sc1
    buffer_load_dwordx4 v[92:95], v66, s[44:47], s60 offen offset:1024 sc1
    buffer_load_dwordx4 v[96:99], v83, s[44:47], s61 offen sc1
    s_sub_u32 s43, s43, 16
    s_cbranch_scc1 L_end
    s_waitcnt vmcnt(0)
    v_cmp_ne_u64 vcc, s[40:41], v[90:91]
    v_cmp_ne_u64 s[64:65], s[40:41], v[94:95]
    v_cmp_ne_u64 s[66:67], s[40:41], v[98:99]
    s_or_b64 vcc, vcc, s[64:65]
    s_or_b64 vcc, vcc, s[66:67]
    s_cbranch_vccnz {lp}
    ds_write_b64 v84, v[88:89] offset:{QB}
    ds_write_b64 v84, v[92:93] offset:{QB+528}
    ds_write_b64 v82, v[96:97] offset:{HB}
    v_mov_b32 v85, 1
    s_waitcnt lgkmcnt(0)
    ds_write_b32 v2, v85 offset:{F_QH}''')
    STAMP(5)
    spin(F_S2,8,'v2','v86',sleep=1)
    STAMP(6)
    AA(f'''v_and_b32 v86, 15, v0
    v_lshl_add_u32 v87, v86, 2, v2
    v_and_b32 v88, 1, v0
    v_lshl_add_u32 v88, v88, 2, v2
    ds_read_b32 v93, v87 offset:{LW}
    ds_read_b32 v92, v88 offset:{MG}
    v_mov_b32 v94, s40
    v_mov_b32 v95, s41
    v_lshlrev_b32 v87, 4, v86
    s_lshl_b32 s63, s7, 5
    s_add_u32 s63, s63, s62
    s_waitcnt lgkmcnt(0)''')
    for r in (8,4,2): AA(f'v_add_f32_dpp v93, v93, v93 row_ror:{r} row_mask:0xf bank_mask:0xf\ns_nop 1')
    AA(f'''s_mov_b64 exec, 3
    buffer_store_dwordx4 v[92:95], v87, s[44:47], s63 offen sc1
    s_mov_b64 exec, -1''')
    lp=lab('ps'); A(lp+':')
    AA(f'''buffer_load_dwordx4 v[96:99], v87, s[44:47], s62 offen sc1
    s_sub_u32 s43, s43, 16
    s_cbranch_scc1 L_end
    s_waitcnt vmcnt(0)
    v_cmp_ne_u64 vcc, s[40:41], v[98:99]
    s_cbranch_vccnz {lp}
    v_mov_b32 v100, v96
    s_mov_b32 s64, 0x3db8aa3b
    s_nop 0''')
    for r in (8,4,2): AA(f'v_max_f32_dpp v100, v100, v100 row_ror:{r} row_mask:0xf bank_mask:0xf\ns_nop 1')
    AA(f'''v_sub_f32 v96, v96, v100
    v_sub_f32 v92, v92, v100
    v_mul_f32 v96, s64, v96
    v_mul_f32 v92, s64, v92
    v_exp_f32 v96, v96
    v_exp_f32 v92, v92
    s_nop 0
    v_mul_f32 v96, v96, v97
    v_mul_f32 v92, v92, v80
    s_nop 0''')
    for r in (8,4,2): AA(f'v_add_f32_dpp v96, v96, v96 row_ror:{r} row_mask:0xf bank_mask:0xf\ns_nop 1')
    AA(f'''v_rcp_f32 v96, v96
    s_nop 0
    v_mul_f32 v92, v92, v96
    ds_write_b32 v88, v92 offset:{FS}
    s_waitcnt lgkmcnt(0)
    ds_write_b32 v2, v85 offset:{F_SC}''')
    STAMP(7)
    AA(f'''s_cmp_ge_u32 s2, 224
    s_cbranch_scc1 L_end
    s_and_b32 s60, s2, 3
    s_lshr_b32 s61, s2, 2
    s_lshl_b32 s62, s60, 18
    s_lshl_b32 s63, s61, 6
    s_add_u32 s62, s62, s63
    s_add_u32 s62, s62, {FBUF}
    s_add_u32 s63, s62, 0x10000
    s_add_u32 s64, s62, 0x20000
    s_add_u32 s65, s62, 0x30000
    v_lshrrev_b32 v86, 2, v0
    v_lshlrev_b32 v86, 12, v86
    v_lshl_add_u32 v86, v3, 4, v86
    s_mul_i32 s60, s60, 896
    s_lshr_b32 s66, s61, 3
    s_lshl_b32 s66, s66, 7
    s_add_u32 s60, s60, s66
    s_and_b32 s66, s61, 7
    s_lshl_b32 s66, s66, 3
    s_add_u32 s60, s60, s66
    v_lshlrev_b32 v87, 1, v3''')
    srd(48,34,3584)
    lp=lab('pf'); A(lp+':')
    AA(f'''buffer_load_dwordx4 v[88:91], v86, s[44:47], s62 offen sc1
    buffer_load_dwordx4 v[92:95], v86, s[44:47], s63 offen sc1
    buffer_load_dwordx4 v[96:99], v86, s[44:47], s64 offen sc1
    buffer_load_dwordx4 v[100:103], v86, s[44:47], s65 offen sc1
    s_sub_u32 s43, s43, 16
    s_cbranch_scc1 L_end
    s_waitcnt vmcnt(0)
    v_cmp_ne_u64 vcc, s[40:41], v[90:91]
    v_cmp_ne_u64 s[52:53], s[40:41], v[94:95]
    v_cmp_ne_u64 s[54:55], s[40:41], v[98:99]
    v_cmp_ne_u64 s[56:57], s[40:41], v[102:103]
    s_or_b64 vcc, vcc, s[52:53]
    s_or_b64 s[54:55], s[54:55], s[56:57]
    s_or_b64 vcc, vcc, s[54:55]
    s_cbranch_vccnz {lp}''')
    STAMP(8)
    AA('''v_add_f32 v88, v88, v92
    v_add_f32 v89, v89, v93
    v_add_f32 v96, v96, v100
    v_add_f32 v97, v97, v101
    v_add_f32 v88, v88, v96
    v_add_f32 v89, v89, v97''')
    dpp2('v_add_f32','v88','v89',(4,8))
    AA(f'''v_mov_b32 v90, v88
    v_mov_b32 v91, v89
    s_nop 0
    v_permlane16_swap_b32 v88, v90
    v_permlane16_swap_b32 v89, v91
    v_add_f32 v88, v88, v90
    v_add_f32 v89, v89, v91
    v_mov_b32 v90, v88
    v_mov_b32 v91, v89
    s_nop 0
    v_permlane32_swap_b32 v88, v90
    v_permlane32_swap_b32 v89, v91
    v_add_f32 v88, v88, v90
    v_add_f32 v89, v89, v91
    v_cvt_pk_bf16_f32 v88, v88, v89
    s_mov_b64 exec, 15
    buffer_store_short v88, v87, s[48:51], s60 offen
    buffer_store_short_d16_hi v88, v87, s[48:51], s60 offen offset:64
    s_cmp_lg_u32 s2, 0
    s_cbranch_scc1 L_end
    s_mov_b64 exec, 1
    v_mov_b32 v86, 0
    buffer_store_dwordx2 v[90:91], v86, s[44:47], 0 offen''' .replace('buffer_store_dwordx2 v[90:91]','v_mov_b32 v90, s40\nv_mov_b32 v91, s41\nbuffer_store_dwordx2 v[90:91]'))
    AA('s_branch L_end')
    A('L_comp:')
    AA(f'''s_sub_u32 s60, s3, 2
    v_and_b32 v3, 15, v0
    v_lshrrev_b32 v4, 4, v0
    v_mov_b32 v5, 0
    v_mov_b32 v6, 0
    v_mov_b32 v1, 1
    v_lshl_add_u32 v7, v0, 2, v2
    s_cmp_lg_u32 s60, 0
    s_cbranch_scc1 L_noinit
    ds_write_b32 v7, v5 offset:{HB}
    L_noinit:
    v_lshrrev_b32 v8, 2, v0
    v_and_b32 v9, 3, v0
    v_and_b32 v10, 3, v8
    v_lshl_add_u32 v10, v4, 3, v10
    v_mul_u32_u24 v10, 896, v10
    v_lshl_add_u32 v10, v9, 3, v10
    s_lshl_b32 s61, s60, 7
    s_add_u32 s61, s61, {WO_STG}
    v_add_u32 v10, s61, v10
    v_xor_b32 v11, v3, v4
    v_lshlrev_b32 v11, 4, v11
    v_lshl_add_u32 v11, v3, 9, v11
    s_lshl_b32 s61, s60, 14
    v_add_u32 v11, s61, v11
    v_xor_b32 v12, 64, v11
    v_xor_b32 v13, 128, v11
    v_xor_b32 v14, 192, v11
    v_and_b32 v15, 7, v8
    v_lshlrev_b32 v15, 1, v15
    v_bfe_u32 v16, v0, 1, 1
    s_lshl_b32 s61, s60, 2
    v_add_u32 v16, s61, v16
    v_xor_b32 v15, v15, v16
    v_lshlrev_b32 v15, 4, v15
    v_lshl_add_u32 v15, v8, 9, v15
    v_and_b32 v16, 1, v0
    v_lshl_add_u32 v15, v16, 3, v15
    v_mul_u32_u24 v17, 528, v16
    v_lshl_add_u32 v17, v4, 4, v17
    v_add_u32 v17, v2, v17
    v_lshl_add_u32 v18, v16, 2, v2
    v_xor_b32 v16, 32, v15
    s_waitcnt lgkmcnt(0)
    s_load_dwordx2 s[40:41], s[38:39], 0''')
    srd(44,38,WSN)
    AA(f'''s_lshl_b32 s61, s60, 4
    s_add_u32 s61, s61, 100
    s_waitcnt lgkmcnt(0)
    s_add_u32 s40, s40, 1
    s_addc_u32 s41, s41, 0
    s_barrier''')
    spin(F_PROG,84,'v2','v19',sleep=2)
    STAMP(1)
    ls=lab('nostg')
    AA(f's_cmp_eq_u32 s60, 7\ns_cbranch_scc1 {ls}')
    for h in range(3):
        for T in range(4):
            b=96+(h*4+T)*4
            AA(f'ds_read_b64_tr_b16 v[{b}:{b+1}], v10 offset:{h*28672+T*32}\nds_read_b64_tr_b16 v[{b+2}:{b+3}], v10 offset:{h*28672+T*32+3584}')
    ldsadd(F_STG,'v2','v1')
    A(ls+':')
    spin(F_PROG,'s61','v2','v19',sleep=2)
    STAMP(2)
    for t in range(2):
        for m in range(8):
            b=32+(t*8+m)*4
            AA(f'ds_read_b128 v[{b}:{b+3}], v{11+(m&3)} offset:{t*8192+(m>>2)*256}')
    AA(f'''s_lshl_b32 s62, s60, 2
    v_add_u32 v19, s62, v2
    v_cmp_eq_u32 vcc, 0, v3
    v_lshlrev_b32 v20, 4, v4
    v_mov_b32 v21, {HZ-HB}
    v_cndmask_b32 v20, v21, v20, vcc
    v_add_u32 v20, v2, v20
    s_waitcnt lgkmcnt(0)
    ds_write_b32 v19, v1 offset:{F_KC}''')
    spin(F_QH,1,'v2','v19',sleep=1)
    STAMP(3)
    AA(f'ds_read_b128 v[24:27], v20 offset:{HB}\nds_read_b32 v23, v2 offset:{G1}\ns_waitcnt lgkmcnt(0)')
    for T in range(4):
        AA(f'v_mfma_f32_16x16x32_bf16 v[{144+4*T}:{147+4*T}], v[24:27], v[{128+4*T}:{131+4*T}], 0')
    AA('s_nop 7')
    for T in range(4): AA(f'v_mul_f32 v{28+T}, v23, v{144+4*T}')
    for m in range(8): AA(f'ds_read_b128 v[{128+4*m}:{131+4*m}], v17 offset:{QB+m*64}')
    for m in range(8):
        AA(f's_waitcnt lgkmcnt({7-m})')
        for t in range(2):
            b=32+(t*8+m)*4; d=20+t*4
            c='0' if m==0 else f'v[{d}:{d+3}]'
            AA(f'v_mfma_f32_16x16x32_bf16 v[{d}:{d+3}], v[{128+4*m}:{131+4*m}], v[{b}:{b+3}], {c}')
    AA(f'''s_lshl_b32 s62, s60, 3
    v_add_u32 v19, s62, v2
    v_and_b32 v32, 7, v0
    v_lshl_add_u32 v32, v32, 3, v2
    s_mov_b32 s63, 0x3db8aa3b
    s_nop 3
    v_cvt_pk_bf16_f32 v20, v20, v21
    v_cvt_pk_bf16_f32 v24, v24, v25
    v_and_b32 v21, 0xffff0000, v20
    v_lshlrev_b32 v20, 16, v20
    v_and_b32 v25, 0xffff0000, v24
    v_lshlrev_b32 v24, 16, v24
    v_max_f32 v22, v20, v24
    v_max_f32 v23, v21, v25''')
    dpp2('v_max_f32','v22','v23',(8,4,2,1))
    AA(f'ds_write_b64 v19, v[22:23] offset:{MW}')
    ldsadd(F_S1,'v2','v1')
    spin(F_S1,8,'v2','v33')
    AA(f'ds_read_b64 v[22:23], v32 offset:{MW}\ns_waitcnt lgkmcnt(0)')
    dpp2('v_max_f32','v22','v23',(4,2,1))
    AA(f'''v_lshrrev_b32 v34, 2, v3
    v_lshlrev_b32 v34, 4, v34
    v_lshl_add_u32 v34, v9, 1, v34
    s_lshl_b32 s62, s60, 6
    v_add3_u32 v34, v34, s62, v2
    ds_write_b64 v2, v[22:23] offset:{MG}
    v_sub_f32 v20, v20, v22
    v_sub_f32 v21, v21, v23
    v_sub_f32 v24, v24, v22
    v_sub_f32 v25, v25, v23
    v_mul_f32 v20, s63, v20
    v_mul_f32 v21, s63, v21
    v_mul_f32 v24, s63, v24
    v_mul_f32 v25, s63, v25
    v_exp_f32 v20, v20
    v_exp_f32 v21, v21
    v_exp_f32 v24, v24
    v_exp_f32 v25, v25
    s_nop 0
    v_add_f32 v22, v20, v24
    v_add_f32 v23, v21, v25
    v_cvt_pk_bf16_f32 v20, v20, v21
    v_cvt_pk_bf16_f32 v24, v24, v25
    s_mov_b64 exec, 0xffff
    ds_write_b16 v34, v20 offset:{PB}
    ds_write_b16_d16_hi v34, v20 offset:{PB+528}
    ds_write_b16 v34, v24 offset:{PB+8}
    ds_write_b16_d16_hi v34, v24 offset:{PB+536}
    s_mov_b64 exec, -1''')
    dpp2('v_add_f32','v22','v23',(8,4,2,1))
    AA(f'ds_write_b64 v19, v[22:23] offset:{LW}')
    ldsadd(F_S2,'v2','v1')
    spin(F_S2,8,'v2','v33')
    STAMP(4)
    for ks in range(8): AA(f'ds_read_b128 v[{128+4*ks}:{131+4*ks}], v17 offset:{PB+ks*64}')
    AA(f'''v_add_u32 v32, 0x10000, v15
    v_add_u32 v33, 0x10000, v16
    v_and_b32 v34, 1, v0
    v_lshlrev_b32 v34, 1, v34
    v_bfe_u32 v35, v0, 1, 1
    v_add_u32 v34, v34, v35
    v_lshl_add_u32 v34, v34, 2, v4
    v_lshlrev_b32 v34, 4, v34
    v_and_b32 v35, 7, v0
    v_lshlrev_b32 v35, 8, v35
    v_lshl_add_u32 v35, v4, 5, v35
    s_lshl_b32 s62, s6, 3
    s_add_u32 s62, s62, s4
    s_lshl_b32 s62, s62, 14
    s_add_u32 s62, s62, {OBUF}
    s_lshl_b32 s63, s60, 11
    s_lshl_b32 s64, s7, 8
    s_add_u32 s63, s63, s64
    s_add_u32 s63, s63, s62
    s_lshl_b32 s64, s7, 11
    s_add_u32 s62, s62, s64
    s_lshl_b32 s64, s6, 6
    s_lshl_b32 s65, s4, 3
    s_add_u32 s64, s64, s65
    s_add_u32 s64, s64, s7
    s_lshl_b32 s64, s64, 12
    s_lshl_b32 s65, s60, 9
    s_add_u32 s64, s64, s65
    s_add_u32 s64, s64, {FBUF}
    v_lshlrev_b32 v36, 4, v0
    v_and_b32 v37, 2, v0
    v_cmp_ne_u32 s[66:67], 0, v37
    v_mov_b32 v58, s40
    v_mov_b32 v59, s41''')
    for ks in range(8):
        if ks==7:
            spin(F_SC,1,'v2','v19')
            AA(f'ds_read_b32 v37, v18 offset:{FS}')
        spin(F_PROG,212+16*(ks+1),'v2','v19',sleep=(1 if ks<6 else 0))
        if ks==7: STAMP(5)
        a0,a1=(15,16) if ks<4 else (32,33)
        o=(ks&3)*16384
        AA(f'''ds_read_b64_tr_b16 v[40:41], v{a0} offset:{o}
        ds_read_b64_tr_b16 v[42:43], v{a0} offset:{o+8192}
        ds_read_b64_tr_b16 v[44:45], v{a1} offset:{o}
        ds_read_b64_tr_b16 v[46:47], v{a1} offset:{o+8192}
        s_waitcnt lgkmcnt(2)
        v_mfma_f32_16x16x32_bf16 v[48:51], v[40:43], v[{128+4*ks}:{131+4*ks}], {'0' if ks==0 else 'v[48:51]'}
        s_waitcnt lgkmcnt(0)
        v_mfma_f32_16x16x32_bf16 v[52:55], v[44:47], v[{128+4*ks}:{131+4*ks}], {'0' if ks==0 else 'v[52:55]'}''')
    AA('s_nop 7')
    for r in range(4): AA(f'v_cndmask_b32 v{48+r}, v{48+r}, v{52+r}, s[66:67]')
    for r in range(4): AA(f'v_mul_f32 v{48+r}, v37, v{48+r}')
    AA(f'''v_cvt_pk_bf16_f32 v56, v48, v49
    v_cvt_pk_bf16_f32 v57, v50, v51
    s_mov_b32 exec_lo, 0x000f000f
    s_mov_b32 exec_hi, 0x000f000f
    buffer_store_dwordx4 v[56:59], v34, s[44:47], s63 offen sc1
    s_mov_b64 exec, -1''')
    STAMP(6)
    AA('s_cmp_eq_u32 s60, 7\ns_cbranch_scc1 L_end')
    lp=lab('po'); A(lp+':')
    AA(f'''buffer_load_dwordx4 v[60:63], v35, s[44:47], s62 offen sc1
    buffer_load_dwordx4 v[64:67], v35, s[44:47], s62 offen offset:16 sc1
    buffer_load_dwordx4 v[68:71], v35, s[44:47], s62 offen offset:128 sc1
    buffer_load_dwordx4 v[72:75], v35, s[44:47], s62 offen offset:144 sc1
    s_sub_u32 s43, s43, 16
    s_cbranch_scc1 L_end
    s_waitcnt vmcnt(0)
    v_cmp_ne_u64 vcc, s[40:41], v[62:63]
    v_cmp_ne_u64 s[52:53], s[40:41], v[66:67]
    v_cmp_ne_u64 s[54:55], s[40:41], v[70:71]
    v_cmp_ne_u64 s[56:57], s[40:41], v[74:75]
    v_mov_b32 v62, v64
    v_mov_b32 v63, v65
    v_mov_b32 v70, v72
    v_mov_b32 v71, v73
    s_or_b64 vcc, vcc, s[52:53]
    s_or_b64 s[54:55], s[54:55], s[56:57]
    s_or_b64 vcc, vcc, s[54:55]
    s_cbranch_vccnz {lp}''')
    STAMP(7)
    for T in range(4): AA(f'v_mfma_f32_16x16x32_bf16 v[{76+4*T}:{79+4*T}], v[60:63], v[{96+4*T}:{99+4*T}], 0')
    for T in range(4): AA(f'v_mfma_f32_16x16x32_bf16 v[{76+4*T}:{79+4*T}], v[68:71], v[{112+4*T}:{115+4*T}], v[{76+4*T}:{79+4*T}]')
    AA('s_nop 4')
    for T in range(4):
        b=76+4*T
        AA(f'v_add_f32 v{b}, v{b}, v{b+1}\nv_add_f32 v{b+2}, v{b+2}, v{b+3}\nv_add_f32 v{b}, v{b}, v{28+T}\nv_add_f32 v{b}, v{b}, v{b+2}')
    AA(f'''s_nop 1
    v_permlane16_swap_b32 v76, v80
    v_permlane16_swap_b32 v84, v88
    v_add_f32 v56, v76, v80
    v_add_f32 v57, v84, v88
    s_mov_b32 exec_hi, 0
    buffer_store_dwordx4 v[56:59], v36, s[44:47], s64 offen sc1''')
    STAMP(8)
    A('L_end:')
    dump_stamps(16)
    A('L_exit:')
    AA('s_endpgm')
    A(f'''.section .rodata,"a"
.p2align 6
.amdhsa_kernel {NAME}_kernel
  .amdhsa_next_free_vgpr 160
  .amdhsa_next_free_sgpr 102
  .amdhsa_accum_offset 160
  .amdhsa_group_segment_fixed_size 0
  .amdhsa_kernarg_size 96
  .amdhsa_user_sgpr_count 2
  .amdhsa_user_sgpr_kernarg_segment_ptr 1
  .amdhsa_system_sgpr_workgroup_id_x 1
.end_amdhsa_kernel''')
    return '\n'.join(L)+'\n'

def build_dbg(name, **kw):
    sys.path.insert(0,'cdna_kernels')
    s=gen(debug=True,**kw)
    s+=f'''.amdgpu_metadata
---
amdhsa.version: [1, 2]
amdhsa.kernels:
  - .name: {NAME}_kernel
    .symbol: {NAME}_kernel.kd
    .kernarg_segment_size: 96
    .kernarg_segment_align: 8
    .group_segment_fixed_size: 0
    .private_segment_fixed_size: 0
    .wavefront_size: 64
    .sgpr_count: 102
    .vgpr_count: 160
    .max_flat_workgroup_size: 640
    .args:
      - {{.name: kernargs, .size: 96, .offset: 0, .value_kind: by_value}}
...
.end_amdgpu_metadata
'''
    p='bench/'+name
    open(p+'.s','w').write(s)
    r=subprocess.run(['clang','-x','assembler','-target','amdgcn-amd-amdhsa','-mcpu=gfx950',p+'.s','-o',p+'.co'],capture_output=True,text=True)
    if r.returncode: print(r.stderr[:1500]); sys.exit(1)
    return f'./host {name}.co {NAME}_kernel 256 640 163840 15 16 2560 1 1 > {name}.txt'
if __name__=='__main__':
    open('cdna_kernels/'+NAME+'.s','w').write(gen())
```

```python
import sys, subprocess
NAME='gated_mix__sliding_block_cached__dense_activation_relu__decode'
HDR=open('cdna_kernels/'+NAME+'.s.ref').read().split('; Override launch')[0]

def gen(debug=False, WK=32, WV=40, psleep=2, ntkv=True, ntw=True, rotmul=4, opts=()):
    L=[]; A=L.append
    def AA(s):
        for x in s.strip().split('\n'): A('    '+x.strip())
    WQ_STG=131072; W1_STG=WQ_STG+14336
    SM=W1_STG+14336
    WO_STG=WQ_STG
    QB=0; PB=1056; MW=2112; LW=2176; MG=2240; FS=2248; G1=2256; TG=2272; GW=2816
    HB=2304; HZ=2560; F_PROG=2576; F_QH=2584; F_S1=2588; F_S2=2592; F_SC=2596; F_KC=2608
    LDS=163840
    QBUF=0x10000; HBUF=0x20000; SBUF=0x28000; OBUF=0x30000; FBUF=0x100000; WSN=0x200000
    NK=' nt' if ntkv else ''; NW=' nt' if ntw else ''
    cnt=[0]
    def lab(p): cnt[0]+=1; return f'L_{p}{cnt[0]}'
    def STAMP(k):
        if debug: A(f'    s_memrealtime s[{68+2*k}:{69+2*k}]')
    def srd(d,p,n): AA(f's_mov_b32 s{d}, s{p}\ns_mov_b32 s{d+1}, s{p+1}\ns_mov_b32 s{d+2}, {n}\ns_mov_b32 s{d+3}, 0x20000')
    def spin(off,thr,vf,vt,sleep=0):
        l=lab('sp')
        A(l+':')
        AA(f'ds_read_b32 {vt}, {vf} offset:{off}\ns_sub_u32 s43, s43, 1\ns_cbranch_scc1 L_end')
        if sleep: AA(f's_sleep {sleep}')
        AA(f's_waitcnt lgkmcnt(0)\nv_readfirstlane_b32 s42, {vt}\ns_cmp_ge_u32 s42, {thr}\ns_cbranch_scc0 {l}')
    def ldsadd(off,vf,vone):
        AA(f's_waitcnt lgkmcnt(0)\ns_mov_b64 exec, 1\nds_add_u32 {vf}, {vone} offset:{off}\ns_mov_b64 exec, -1')
    def dpp2(op,a,b,rots):
        for r in rots:
            AA(f's_nop 0\n{op}_dpp {a}, {a}, {a} row_ror:{r} row_mask:0xf bank_mask:0xf\n{op}_dpp {b}, {b}, {b} row_ror:{r} row_mask:0xf bank_mask:0xf')
    def dump_stamps(n):
        if not debug: return
        AA(f'''s_waitcnt lgkmcnt(0)
        s_mul_i32 s60, s2, 10
        s_add_u32 s60, s60, s3
        s_lshl_b32 s60, s60, 7
        s_add_u32 s60, s60, 0x10000000
        s_add_u32 s60, s38, s60
        s_addc_u32 s61, s39, 0
        s_mov_b64 exec, -1
        v_mov_b32 v1, 0''')
        for k in range(16):
            AA(f'v_mov_b32 v2, s{68+2*k}\nv_mov_b32 v3, s{69+2*k}\nglobal_store_dwordx2 v1, v[2:3], s[60:61] offset:{8*k}')
    A(HDR+f'; @launch grid=(256,1,1) block=(640,1,1) lds={LDS}')
    A(f'.amdgcn_target "amdgcn-amd-amdhsa--gfx950"\n.text\n.globl {NAME}_kernel\n.p2align 8\n.type {NAME}_kernel,@function\n{NAME}_kernel:')
    if debug:
        for k in range(1,16): AA(f's_mov_b64 s[{68+2*k}:{69+2*k}], 0')
    STAMP(0)
    AA(f'''s_cmp_ge_u32 s2, 256
    s_cbranch_scc1 L_exit
    v_lshrrev_b32 v1, 6, v0
    v_and_b32 v0, 63, v0
    v_mov_b32 v2, {SM}
    v_readfirstlane_b32 s3, v1
    v_mov_b32 v5, 0
    v_lshl_add_u32 v7, v0, 2, v2
    s_cmp_lg_u32 s3, 9
    s_cbranch_scc1 L_noinit
    ds_write_b32 v7, v5 offset:{HB}
    ds_write_b32 v7, v5 offset:{HB+256}
    s_waitcnt lgkmcnt(0)
    L_noinit:
    s_load_dwordx16 s[16:31], s[0:1], 0
    s_load_dwordx8 s[32:39], s[0:1], 64
    s_and_b32 s4, s2, 7
    s_lshr_b32 s5, s2, 3
    s_and_b32 s6, s5, 3
    s_lshr_b32 s7, s5, 2
    s_mov_b32 s43, 0x400000
    s_barrier
    s_cmp_eq_u32 s3, 1
    s_cbranch_scc1 L_aux
    s_cmp_gt_u32 s3, 1
    s_cbranch_scc1 L_comp''')
    AA(f'''s_setprio 3
    v_lshlrev_b32 v1, 4, v0
    v_lshrrev_b32 v3, 5, v0
    v_lshlrev_b32 v4, 4, v3
    v_xor_b32 v8, v1, v4
    v_lshlrev_b32 v4, 5, v3
    v_xor_b32 v16, v1, v4''')
    for i in range(1,8): AA(f'v_xor_b32 v{8+i}, {i<<5}, v8')
    for i in range(1,4): AA(f'v_xor_b32 v{16+i}, {i<<6}, v16')
    AA(f'''s_lshl_b32 s62, s6, 3
    s_add_u32 s62, s62, s4
    s_lshl_b32 s62, s62, 22
    s_lshl_b32 s63, s7, 17
    s_add_u32 s62, s62, s63
    s_add_u32 s62, s62, 0x300000
    s_mul_i32 s63, s5, {rotmul*1024}
    s_and_b32 s63, s63, 0x1ffff
    s_mov_b32 s64, 0
    s_mov_b32 s14, 0
    s_waitcnt lgkmcnt(0)''')
    srd(56,18,134217728); srd(8,20,134217728)
    def prog(W):
        AA(f's_add_u32 s64, s64, 4\\ns_sub_u32 s15, s64, {W}\\ns_max_i32 s14, s14, s15\\nv_mov_b32 v3, s14\\ns_waitcnt vmcnt({W})\\nds_write_b32 v2, v3 offset:{F_PROG}'.replace('\\n','\n'))
    STAMP(1)
    def kvloop(sr,vb,per,tag,check,W,end):
        l=lab(tag); A(l+':')
        check()
        for hgrp in range(2):
            AA(f's_add_u32 s66, s62, s67\ns_add_u32 s67, s67, 4096\ns_and_b32 s67, s67, 0x1ffff')
            for k in range(4): AA(f'buffer_load_dwordx4 v{vb+(hgrp*4+k)%per}, s[{sr}:{sr+3}], s66 offen offset:{k*1024}{NK} lds')
            AA('s_add_u32 m0, m0, 4096')
            prog(W)
        AA(f's_add_u32 s65, s65, 1\ns_cmp_lt_u32 s65, {end}\ns_cbranch_scc1 {l}')
        return l
    def vcheck():
        l=lab('vc')
        AA(f's_bitcmp1_b32 s65, 0\ns_cbranch_scc1 {l}\ns_lshl_b32 s66, s65, 1\nv_add_u32 v5, s66, v2')
        spin(F_KC,1,'v5','v4')
        A(l+':')
    AA(f's_mov_b32 m0, 0\ns_mov_b32 s65, 0\ns_mov_b32 s67, s63')
    kvloop(56,8,8,'k',lambda:None,WK,16)
    STAMP(2)
    srd(48,24,3670016); srd(52,30,1605632)
    AA(f'''s_lshl_b32 s60, s4, 9
    s_lshl_b32 s61, s7, 5
    s_add_u32 s60, s60, s61
    s_mul_i32 s60, s60, 896
    s_lshl_b32 s61, s4, 3
    s_add_u32 s61, s61, s7
    s_mul_i32 s61, s61, 25088
    s_mul_i32 s66, s6, 224
    s_add_u32 s60, s60, s66
    s_add_u32 s61, s61, s66
    v_lshrrev_b32 v3, 4, v0
    v_and_b32 v4, 15, v0
    v_mul_u32_u24 v1, 896, v3
    v_lshl_add_u32 v1, v4, 4, v1
    s_mov_b32 m0, 0
    s_mov_b32 s65, 0
    s_mov_b32 s67, s63
    s_mov_b32 s13, 8''')
    lv=kvloop(8,16,4,'v',vcheck,WV,'s13')
    AA('s_cmp_eq_u32 s65, 16\ns_cbranch_scc1 L_vdone')
    STAMP(3)
    spin(F_QH,1,'v2','v4')
    AA(f's_mov_b32 m0, {WO_STG}')
    for blk,(sr,so) in enumerate(((48,'s60'),(48,'s60'),(52,'s61'))):
        l=lab('ld')
        if blk==1: AA(f's_add_u32 s60, s60, {256*896-28672}')
        AA(f's_mov_b32 s12, 2')
        A(l+':')
        for k in range(4): AA(f'buffer_load_dwordx4 v1, s[{sr}:{sr+3}], {so} offen{NW} lds\ns_add_u32 m0, m0, 1024\ns_add_u32 {so}, {so}, 3584')
        prog(WV)
        AA(f's_sub_u32 s12, s12, 1\ns_cmp_lg_u32 s12, 0\ns_cbranch_scc1 {l}')
    AA(f's_mov_b32 m0, 0x10000\ns_mov_b32 s13, 16\ns_branch {lv}')
    A('L_vdone:')
    STAMP(4)
    w=WV
    while w>0:
        w-=4
        if w<=16 or w%16==0: AA(f'v_mov_b32 v3, {280-w}\ns_waitcnt vmcnt({w})\nds_write_b32 v2, v3 offset:{F_PROG}')
    STAMP(5)
    AA('s_branch L_end')
    A('L_aux:')
    AA(f'''s_setprio 2
    v_and_b32 v3, 3, v0
    v_lshrrev_b32 v4, 4, v0
    v_mul_u32_u24 v5, 896, v3
    v_lshl_add_u32 v5, v4, 4, v5
    v_lshrrev_b32 v6, 1, v0
    v_and_b32 v7, 1, v0
    v_lshlrev_b32 v7, 4, v7
    v_lshl_add_u32 v64, v6, 13, v7
    v_mul_u32_u24 v65, 3584, v6
    v_add_u32 v65, v65, v7
    v_lshlrev_b32 v66, 4, v0
    s_lshl_b32 s60, s4, 10
    s_lshl_b32 s61, s5, 5
    s_add_u32 s60, s60, s61
    s_mul_i32 s63, s4, 14
    s_add_u32 s63, s63, s5
    s_lshl_b32 s61, s63, 5
    s_mul_i32 s62, s6, 896
    s_mov_b32 m0, {WQ_STG}
    s_waitcnt lgkmcnt(0)
    s_load_dwordx2 s[40:41], s[38:39], 0''')
    srd(48,22,3670016); srd(52,16,3584); srd(56,28,1605632); srd(8,32,896); srd(44,38,WSN)
    for m in range(14):
        AA(f'buffer_load_dwordx4 v64, s[48:51], s60 offen{NW} lds\ns_add_u32 m0, m0, 1024\ns_add_u32 s60, s60, {32*8192}')
    for m in range(14):
        AA(f'buffer_load_dwordx4 v[{8+4*m}:{11+4*m}], v5, s[52:55], 0 offen offset:{64*m}')
    lq=lab('now1')
    AA(f's_cmp_ge_u32 s5, 14\ns_cbranch_scc1 {lq}')
    for m in range(14):
        AA(f'buffer_load_dwordx4 v65, s[56:59], s61 offen{NW} lds\ns_add_u32 m0, m0, 1024\ns_add_u32 s61, s61, {32*3584}')
    A(lq+':')
    AA(f'''s_mov_b32 m0, {SM+GW}
    v_lshl_add_u32 v68, v4, 4, v2
    buffer_load_dwordx4 v66, s[8:11], 0 offen lds
    v_and_b32 v6, 15, v0
    v_lshlrev_b32 v6, 3, v6
    v_lshl_add_u32 v6, v4, 8, v6
    v_add_u32 v6, {WQ_STG}, v6
    v_lshlrev_b32 v7, 14, v3
    v_lshl_add_u32 v7, v4, 4, v7
    v_lshlrev_b32 v67, 13, v3
    v_lshl_add_u32 v67, v4, 4, v67
    s_lshl_b32 s60, s4, 11
    s_lshl_b32 s61, s5, 6
    s_add_u32 s60, s60, s61
    s_add_u32 s60, s60, {QBUF}
    s_lshl_b32 s61, s63, 6
    s_add_u32 s61, s61, {HBUF}''')
    STAMP(1)
    def proj(stg,relu,voff,soff,wait):
        AA(wait)
        for m in range(14):
            AA(f'ds_read_b64_tr_b16 v[{80+4*m}:{81+4*m}], v6 offset:{stg+m*1024}\nds_read_b64_tr_b16 v[{82+4*m}:{83+4*m}], v6 offset:{stg+m*1024+128}')
        for m in range(14):
            if m in (0,4,8,11): AA(f's_waitcnt lgkmcnt({ {0:15,4:12,8:6,11:0}[m] })' if m else 's_waitcnt lgkmcnt(15)')
            if m==0: AA('s_waitcnt lgkmcnt(15)')
            c='0' if m==0 else 'v[76:79]'
            AA(f'v_mfma_f32_16x16x32_bf16 v[76:79], v[{80+4*m}:{83+4*m}], v[{8+4*m}:{11+4*m}], {c}')
        AA('v_mov_b32 v138, s40\nv_mov_b32 v139, s41\ns_nop 6')
        if relu: AA('v_max_f32 v76, 0, v76\nv_max_f32 v77, 0, v77\nv_max_f32 v78, 0, v78\nv_max_f32 v79, 0, v79')
        AA(f'''v_cvt_pk_bf16_f32 v136, v76, v77
        v_cvt_pk_bf16_f32 v137, v78, v79
        s_mov_b32 exec_lo, 0x000f000f
        s_mov_b32 exec_hi, 0x000f000f
        buffer_store_dwordx4 v[136:139], {voff}, s[44:47], {soff} offen sc1
        s_mov_b64 exec, -1''')
    lw=lab('qw'); lw2=lab('qw')
    AA(f's_cmp_ge_u32 s5, 14\ns_cbranch_scc1 {lw}\ns_waitcnt vmcnt(15)\ns_branch {lw2}')
    A(lw+':'); AA('s_waitcnt vmcnt(1)'); A(lw2+':')
    AA('s_waitcnt lgkmcnt(0)\ns_add_u32 s40, s40, 1\ns_addc_u32 s41, s41, 0')
    STAMP(2)
    proj(0,False,'v7','s60','')
    STAMP(3)
    l1=lab('noffn')
    AA(f's_cmp_ge_u32 s5, 14\ns_cbranch_scc1 {l1}')
    proj(14336,True,'v67','s61','s_waitcnt vmcnt(2)')
    A(l1+':')
    AA('s_waitcnt vmcnt(1)')
    for m in range(14): AA(f'ds_read_b128 v[{80+4*m}:{83+4*m}], v68 offset:{GW+64*m}')
    AA('s_waitcnt lgkmcnt(0)')
    for m in range(14): AA(f"v_mfma_f32_16x16x32_bf16 v[76:79], v[{80+4*m}:{83+4*m}], v[{8+4*m}:{11+4*m}], {'0' if m==0 else 'v[76:79]'}")
    AA(f'''v_lshl_add_u32 v82, v3, 2, v2
    s_nop 6
    v_mov_b32 v80, v76
    v_cvt_pk_bf16_f32 v80, v80, v80
    v_lshlrev_b32 v80, 16, v80
    v_mul_f32 v80, 0xbfb8aa3b, v80
    v_exp_f32 v80, v80
    s_nop 0
    v_add_f32 v80, 1.0, v80
    v_rcp_f32 v80, v80
    s_nop 0
    v_cvt_pk_bf16_f32 v80, v80, v80
    v_lshlrev_b32 v80, 16, v80
    v_sub_f32 v81, 1.0, v80
    v_cvt_pk_bf16_f32 v81, v81, v81
    v_lshlrev_b32 v81, 16, v81
    ds_write_b32 v82, v81 offset:{G1}
    v_readlane_b32 s13, v80, s6
    ds_write_b64 v2, v[138:139] offset:{TG}
    s_lshl_b32 s60, s6, 3
    s_add_u32 s60, s60, s4
    s_lshl_b32 s62, s60, 8
    s_add_u32 s62, s62, {SBUF}
    s_lshl_b32 s60, s60, 11
    s_add_u32 s60, s60, {QBUF}
    s_lshl_b32 s61, s4, 3
    s_add_u32 s61, s61, s7
    s_mul_i32 s61, s61, 112
    s_add_u32 s61, s61, {HBUF}
    v_and_b32 v82, 15, v0
    v_min_u32 v82, 6, v82
    v_lshlrev_b32 v83, 4, v82
    v_lshl_add_u32 v83, v4, 13, v83
    v_lshl_add_u32 v82, v82, 3, v2
    v_lshl_add_u32 v82, v4, 6, v82
    v_lshl_add_u32 v84, v0, 3, v2''')
    STAMP(4)
    lp=lab('pq'); A(lp+':')
    AA(f'''buffer_load_dwordx4 v[88:91], v66, s[44:47], s60 offen sc1
    buffer_load_dwordx4 v[92:95], v66, s[44:47], s60 offen offset:1024 sc1
    buffer_load_dwordx4 v[96:99], v83, s[44:47], s61 offen sc1
    s_sub_u32 s43, s43, 16
    s_cbranch_scc1 L_end
    s_sleep {psleep}
    s_waitcnt vmcnt(0)
    v_cmp_ne_u64 vcc, s[40:41], v[90:91]
    v_cmp_ne_u64 s[64:65], s[40:41], v[94:95]
    v_cmp_ne_u64 s[66:67], s[40:41], v[98:99]
    s_or_b64 vcc, vcc, s[64:65]
    s_or_b64 vcc, vcc, s[66:67]
    s_cbranch_vccnz {lp}
    ds_write_b64 v84, v[88:89] offset:{QB}
    ds_write_b64 v84, v[92:93] offset:{QB+528}
    ds_write_b64 v82, v[96:97] offset:{HB}
    v_mov_b32 v85, 1
    s_waitcnt lgkmcnt(0)
    ds_write_b32 v2, v85 offset:{F_QH}''')
    STAMP(5)
    spin(F_S2,8,'v2','v86',sleep=1)
    STAMP(6)
    AA(f'''v_and_b32 v86, 15, v0
    v_lshl_add_u32 v87, v86, 2, v2
    v_and_b32 v88, 1, v0
    v_lshl_add_u32 v88, v88, 2, v2
    ds_read_b32 v93, v87 offset:{LW}
    ds_read_b32 v92, v88 offset:{MG}
    v_mov_b32 v94, s40
    v_mov_b32 v95, s41
    v_lshlrev_b32 v87, 4, v86
    s_lshl_b32 s63, s7, 5
    s_add_u32 s63, s63, s62
    s_waitcnt lgkmcnt(0)''')
    for r in (8,4,2): AA(f'v_add_f32_dpp v93, v93, v93 row_ror:{r} row_mask:0xf bank_mask:0xf\ns_nop 1')
    AA(f'''s_mov_b64 exec, 3
    buffer_store_dwordx4 v[92:95], v87, s[44:47], s63 offen sc1
    s_mov_b64 exec, -1''')
    lp=lab('ps'); A(lp+':')
    AA(f'''buffer_load_dwordx4 v[96:99], v87, s[44:47], s62 offen sc1
    s_sub_u32 s43, s43, 16
    s_cbranch_scc1 L_end
    s_sleep {psleep}
    s_waitcnt vmcnt(0)
    v_cmp_ne_u64 vcc, s[40:41], v[98:99]
    s_cbranch_vccnz {lp}
    v_mov_b32 v100, v96
    s_mov_b32 s64, 0x3db8aa3b
    s_nop 0''')
    for r in (8,4,2): AA(f'v_max_f32_dpp v100, v100, v100 row_ror:{r} row_mask:0xf bank_mask:0xf\ns_nop 1')
    AA(f'''v_sub_f32 v96, v96, v100
    v_sub_f32 v92, v92, v100
    v_mul_f32 v96, s64, v96
    v_mul_f32 v92, s64, v92
    v_exp_f32 v96, v96
    v_exp_f32 v92, v92
    s_nop 0
    v_mul_f32 v96, v96, v97
    v_mul_f32 v92, s13, v92
    s_nop 0''')
    for r in (8,4,2): AA(f'v_add_f32_dpp v96, v96, v96 row_ror:{r} row_mask:0xf bank_mask:0xf\ns_nop 1')
    AA(f'''v_rcp_f32 v96, v96
    s_nop 0
    v_mul_f32 v92, v92, v96
    ds_write_b32 v88, v92 offset:{FS}
    s_waitcnt lgkmcnt(0)
    ds_write_b32 v2, v85 offset:{F_SC}''')
    STAMP(7)
    AA(f'''s_cmp_ge_u32 s2, 224
    s_cbranch_scc1 L_end
    s_lshl_b32 s62, s4, 17
    s_lshl_b32 s63, s5, 6
    s_add_u32 s62, s62, s63
    s_add_u32 s62, s62, {FBUF}
    s_add_u32 s63, s62, 0x8000
    s_add_u32 s64, s62, 0x10000
    s_add_u32 s65, s62, 0x18000
    v_lshrrev_b32 v86, 2, v0
    v_lshlrev_b32 v86, 11, v86
    v_lshl_add_u32 v86, v3, 4, v86
    s_and_b32 s60, s2, 1
    s_mul_i32 s60, s60, 1792
    s_lshr_b32 s66, s4, 1
    s_mul_i32 s66, s66, 224
    s_add_u32 s60, s60, s66
    s_lshl_b32 s66, s5, 3
    s_add_u32 s60, s60, s66
    v_lshlrev_b32 v87, 1, v3''')
    srd(48,34,3584)
    spin(F_PROG,280,'v2','v85',sleep=1)
    lp=lab('pf'); A(lp+':')
    AA(f'''buffer_load_dwordx4 v[88:91], v86, s[44:47], s62 offen sc1
    buffer_load_dwordx4 v[92:95], v86, s[44:47], s63 offen sc1
    buffer_load_dwordx4 v[96:99], v86, s[44:47], s64 offen sc1
    buffer_load_dwordx4 v[100:103], v86, s[44:47], s65 offen sc1
    s_sub_u32 s43, s43, 16
    s_cbranch_scc1 L_end
    s_sleep {psleep}
    s_waitcnt vmcnt(0)
    v_cmp_ne_u64 vcc, s[40:41], v[90:91]
    v_cmp_ne_u64 s[52:53], s[40:41], v[94:95]
    v_cmp_ne_u64 s[54:55], s[40:41], v[98:99]
    v_cmp_ne_u64 s[56:57], s[40:41], v[102:103]
    s_or_b64 vcc, vcc, s[52:53]
    s_or_b64 s[54:55], s[54:55], s[56:57]
    s_or_b64 vcc, vcc, s[54:55]
    s_cbranch_vccnz {lp}''')
    STAMP(8)
    AA('''v_add_f32 v88, v88, v92
    v_add_f32 v89, v89, v93
    v_add_f32 v96, v96, v100
    v_add_f32 v97, v97, v101
    v_add_f32 v88, v88, v96
    v_add_f32 v89, v89, v97''')
    dpp2('v_add_f32','v88','v89',(4,8))
    AA(f'''v_mov_b32 v90, v88
    v_mov_b32 v91, v89
    s_nop 0
    v_permlane16_swap_b32 v88, v90
    v_permlane16_swap_b32 v89, v91
    v_add_f32 v88, v88, v90
    v_add_f32 v89, v89, v91
    v_mov_b32 v90, v88
    v_mov_b32 v91, v89
    s_nop 0
    v_permlane32_swap_b32 v88, v90
    v_permlane32_swap_b32 v89, v91
    v_add_f32 v88, v88, v90
    v_add_f32 v89, v89, v91
    v_cvt_pk_bf16_f32 v88, v88, v89
    s_mov_b64 exec, 15
    buffer_store_short v88, v87, s[48:51], s60 offen
    buffer_store_short_d16_hi v88, v87, s[48:51], s60 offen offset:896
    s_cmp_lg_u32 s2, 0
    s_cbranch_scc1 L_end
    s_mov_b64 exec, 1
    v_mov_b32 v86, 0
    buffer_store_dwordx2 v[90:91], v86, s[44:47], 0 offen''' .replace('buffer_store_dwordx2 v[90:91]','v_mov_b32 v90, s40\nv_mov_b32 v91, s41\nbuffer_store_dwordx2 v[90:91]'))
    AA('s_branch L_end')
    A('L_comp:')
    AA(f'''s_sub_u32 s60, s3, 2
    v_and_b32 v3, 15, v0
    v_lshrrev_b32 v4, 4, v0
    v_mov_b32 v1, 1
    v_lshrrev_b32 v8, 2, v0
    v_and_b32 v9, 3, v0
    v_and_b32 v10, 3, v8
    v_lshl_add_u32 v10, v4, 3, v10
    v_lshlrev_b32 v10, 8, v10
    v_lshl_add_u32 v10, v9, 3, v10
    s_lshr_b32 s61, s60, 1
    s_lshl_b32 s61, s61, 6
    s_add_u32 s61, s61, {WO_STG}
    v_add_u32 v10, s61, v10
    v_xor_b32 v11, v3, v4
    v_lshlrev_b32 v11, 4, v11
    v_lshl_add_u32 v11, v3, 9, v11
    s_lshl_b32 s61, s60, 14
    v_add_u32 v11, s61, v11
    v_xor_b32 v12, 64, v11
    v_xor_b32 v13, 128, v11
    v_xor_b32 v14, 192, v11
    v_and_b32 v15, 7, v8
    v_lshlrev_b32 v15, 1, v15
    v_bfe_u32 v16, v0, 1, 1
    s_lshl_b32 s61, s60, 2
    v_add_u32 v16, s61, v16
    v_xor_b32 v15, v15, v16
    v_lshlrev_b32 v15, 4, v15
    v_lshl_add_u32 v15, v8, 9, v15
    v_and_b32 v16, 1, v0
    v_lshl_add_u32 v15, v16, 3, v15
    v_mul_u32_u24 v17, 528, v16
    v_lshl_add_u32 v17, v4, 4, v17
    v_add_u32 v17, v2, v17
    v_lshl_add_u32 v18, v16, 2, v2
    v_xor_b32 v16, 32, v15
    s_waitcnt lgkmcnt(0)''')
    srd(44,38,WSN)
    AA(f'''s_lshl_b32 s61, s60, 4
    s_add_u32 s61, s61, 16
    s_setprio 1''')
    spin(F_PROG,'s61','v2','v19',sleep=2)
    STAMP(2)
    for t in range(2):
        for m in range(8):
            b=32+(t*8+m)*4
            AA(f'ds_read_b128 v[{b}:{b+3}], v{11+(m&3)} offset:{t*8192+(m>>2)*256}')
    AA(f'''s_lshl_b32 s62, s60, 2
    v_add_u32 v19, s62, v2
    s_and_b32 s59, s60, 1
    v_and_b32 v5, 7, v0
    v_cmp_eq_u32 vcc, 0, v5
    v_lshlrev_b32 v5, 4, v4
    v_lshl_add_u32 v5, v3, 3, v5
    s_lshl_b32 s58, s59, 7
    v_add_u32 v5, s58, v5
    v_mov_b32 v21, {HZ-HB}
    v_cndmask_b32 v5, v21, v5, vcc
    v_add_u32 v5, v2, v5
    v_lshrrev_b32 v8, 1, v4
    v_lshl_add_u32 v8, v8, 2, v2
    s_lshl_b32 s58, s59, 3
    v_add_u32 v8, s58, v8
    s_waitcnt lgkmcnt(0)
    ds_write_b32 v19, v1 offset:{F_KC}''')
    spin(F_QH,1,'v2','v19',sleep=1)
    STAMP(3)
    AA(f'ds_read_b64 v[6:7], v2 offset:{TG}')
    for m in range(8): AA(f'ds_read_b128 v[{128+4*m}:{131+4*m}], v17 offset:{QB+m*64}')
    for m in range(8):
        AA(f's_waitcnt lgkmcnt({7-m})')
        for t in range(2):
            b=32+(t*8+m)*4; d=20+t*4
            c='0' if m==0 else f'v[{d}:{d+3}]'
            AA(f'v_mfma_f32_16x16x32_bf16 v[{d}:{d+3}], v[{128+4*m}:{131+4*m}], v[{b}:{b+3}], {c}')
    AA(f'''v_readfirstlane_b32 s40, v6
    v_readfirstlane_b32 s41, v7
    s_lshl_b32 s62, s60, 3
    v_add_u32 v19, s62, v2
    v_and_b32 v32, 7, v0
    v_lshl_add_u32 v32, v32, 3, v2
    s_mov_b32 s63, 0x3db8aa3b
    s_nop 3
    v_cvt_pk_bf16_f32 v20, v20, v21
    v_cvt_pk_bf16_f32 v24, v24, v25
    v_and_b32 v21, 0xffff0000, v20
    v_lshlrev_b32 v20, 16, v20
    v_and_b32 v25, 0xffff0000, v24
    v_lshlrev_b32 v24, 16, v24
    v_max_f32 v22, v20, v24
    v_max_f32 v23, v21, v25''')
    dpp2('v_max_f32','v22','v23',(8,4,2,1))
    AA(f'ds_write_b64 v19, v[22:23] offset:{MW}')
    ldsadd(F_S1,'v2','v1')
    spin(F_S1,8,'v2','v33')
    AA(f'ds_read_b64 v[22:23], v32 offset:{MW}\ns_waitcnt lgkmcnt(0)')
    dpp2('v_max_f32','v22','v23',(4,2,1))
    AA(f'''v_lshrrev_b32 v34, 2, v3
    v_lshlrev_b32 v34, 4, v34
    v_lshl_add_u32 v34, v9, 1, v34
    s_lshl_b32 s62, s60, 6
    v_add3_u32 v34, v34, s62, v2
    ds_write_b64 v2, v[22:23] offset:{MG}
    v_sub_f32 v20, v20, v22
    v_sub_f32 v21, v21, v23
    v_sub_f32 v24, v24, v22
    v_sub_f32 v25, v25, v23
    v_mul_f32 v20, s63, v20
    v_mul_f32 v21, s63, v21
    v_mul_f32 v24, s63, v24
    v_mul_f32 v25, s63, v25
    v_exp_f32 v20, v20
    v_exp_f32 v21, v21
    v_exp_f32 v24, v24
    v_exp_f32 v25, v25
    s_nop 0
    v_add_f32 v22, v20, v24
    v_add_f32 v23, v21, v25
    v_cvt_pk_bf16_f32 v20, v20, v21
    v_cvt_pk_bf16_f32 v24, v24, v25
    s_mov_b64 exec, 0xffff
    ds_write_b16 v34, v20 offset:{PB}
    ds_write_b16_d16_hi v34, v20 offset:{PB+528}
    ds_write_b16 v34, v24 offset:{PB+8}
    ds_write_b16_d16_hi v34, v24 offset:{PB+536}
    s_mov_b64 exec, -1''')
    dpp2('v_add_f32','v22','v23',(8,4,2,1))
    AA(f'ds_write_b64 v19, v[22:23] offset:{LW}')
    ldsadd(F_S2,'v2','v1')
    spin(F_S2,8,'v2','v33')
    STAMP(4)
    for ks in range(8): AA(f'ds_read_b128 v[{128+4*ks}:{131+4*ks}], v17 offset:{PB+ks*64}')
    AA(f'''v_add_u32 v32, 0x10000, v15
    v_add_u32 v33, 0x10000, v16
    v_and_b32 v34, 1, v0
    v_lshlrev_b32 v34, 1, v34
    v_bfe_u32 v35, v0, 1, 1
    v_add_u32 v34, v34, v35
    v_lshl_add_u32 v34, v34, 2, v4
    v_lshlrev_b32 v34, 4, v34
    v_lshlrev_b32 v35, 8, v3
    v_lshl_add_u32 v35, v4, 5, v35
    s_lshl_b32 s62, s4, 16
    s_add_u32 s62, s62, {OBUF}
    s_lshl_b32 s63, s60, 13
    s_lshl_b32 s64, s5, 11
    s_and_b32 s64, s64, 0x1800
    s_add_u32 s63, s63, s64
    s_lshl_b32 s64, s7, 8
    s_add_u32 s63, s63, s64
    s_add_u32 s63, s63, s62
    s_lshl_b32 s64, s7, 13
    s_add_u32 s62, s62, s64
    s_lshl_b32 s64, s59, 12
    s_add_u32 s62, s62, s64
    s_lshl_b32 s64, s6, 1
    s_add_u32 s64, s64, s59
    s_lshl_b32 s64, s64, 6
    s_lshl_b32 s65, s4, 3
    s_add_u32 s64, s64, s65
    s_add_u32 s64, s64, s7
    s_lshl_b32 s64, s64, 11
    s_lshr_b32 s65, s60, 1
    s_lshl_b32 s65, s65, 9
    s_add_u32 s64, s64, s65
    s_add_u32 s64, s64, {FBUF}
    v_lshlrev_b32 v36, 4, v0
    v_and_b32 v37, 2, v0
    v_cmp_ne_u32 s[66:67], 0, v37
    v_mov_b32 v58, s40
    v_mov_b32 v59, s41''')
    for ks in range(8):
        if ks==7:
            spin(F_SC,1,'v2','v19')
            AA(f'ds_read_b32 v37, v18 offset:{FS}')
        if ks==4:
            spin(F_PROG,216,'v2','v19',sleep=1)
            STAMP(1)
            for h in range(3):
                for T in range(2):
                    b=96+(h*2+T)*4
                    AA(f'ds_read_b64_tr_b16 v[{b}:{b+1}], v10 offset:{h*8192+T*32}\nds_read_b64_tr_b16 v[{b+2}:{b+3}], v10 offset:{h*8192+T*32+1024}')
            AA(f'ds_read_b128 v[24:27], v5 offset:{HB}\nds_read_b32 v23, v8 offset:{G1}\ns_waitcnt lgkmcnt(0)')
            for T in range(2): AA(f'v_mfma_f32_16x16x32_bf16 v[{60+4*T}:{63+4*T}], v[24:27], v[{112+4*T}:{115+4*T}], 0')
            AA('s_nop 7\nv_mul_f32 v28, v23, v60\nv_mul_f32 v29, v23, v64')
        spin(F_PROG,(128 if ks<4 else 152)+16*(ks+1),'v2','v19',sleep=(1 if ks<6 else 0))
        if ks==7: AA('s_setprio 3'); STAMP(5)
        a0,a1=(15,16) if ks<4 else (32,33)
        o=(ks&3)*16384
        AA(f'''ds_read_b64_tr_b16 v[40:41], v{a0} offset:{o}
        ds_read_b64_tr_b16 v[42:43], v{a0} offset:{o+8192}
        ds_read_b64_tr_b16 v[44:45], v{a1} offset:{o}
        ds_read_b64_tr_b16 v[46:47], v{a1} offset:{o+8192}
        s_waitcnt lgkmcnt(2)
        v_mfma_f32_16x16x32_bf16 v[48:51], v[40:43], v[{128+4*ks}:{131+4*ks}], {'0' if ks==0 else 'v[48:51]'}
        s_waitcnt lgkmcnt(0)
        v_mfma_f32_16x16x32_bf16 v[52:55], v[44:47], v[{128+4*ks}:{131+4*ks}], {'0' if ks==0 else 'v[52:55]'}''')
    AA('s_nop 7')
    for r in range(4): AA(f'v_cndmask_b32 v{48+r}, v{48+r}, v{52+r}, s[66:67]')
    for r in range(4): AA(f'v_mul_f32 v{48+r}, v37, v{48+r}')
    AA(f'''v_cvt_pk_bf16_f32 v56, v48, v49
    v_cvt_pk_bf16_f32 v57, v50, v51
    s_mov_b32 exec_lo, 0x000f000f
    s_mov_b32 exec_hi, 0x000f000f
    buffer_store_dwordx4 v[56:59], v34, s[44:47], s63 offen sc1
    s_mov_b64 exec, -1''')
    STAMP(6)
    AA('s_setprio 0')
    lp=lab('po'); A(lp+':')
    AA(f'''buffer_load_dwordx4 v[60:63], v35, s[44:47], s62 offen sc1
    buffer_load_dwordx4 v[64:67], v35, s[44:47], s62 offen offset:16 sc1
    buffer_load_dwordx4 v[68:71], v35, s[44:47], s62 offen offset:128 sc1
    buffer_load_dwordx4 v[72:75], v35, s[44:47], s62 offen offset:144 sc1
    s_sub_u32 s43, s43, 16
    s_cbranch_scc1 L_end
    s_sleep {psleep}
    s_waitcnt vmcnt(0)
    v_cmp_ne_u64 vcc, s[40:41], v[62:63]
    v_cmp_ne_u64 s[52:53], s[40:41], v[66:67]
    v_cmp_ne_u64 s[54:55], s[40:41], v[70:71]
    v_cmp_ne_u64 s[56:57], s[40:41], v[74:75]
    v_mov_b32 v62, v64
    v_mov_b32 v63, v65
    v_mov_b32 v70, v72
    v_mov_b32 v71, v73
    s_or_b64 vcc, vcc, s[52:53]
    s_or_b64 s[54:55], s[54:55], s[56:57]
    s_or_b64 vcc, vcc, s[54:55]
    s_cbranch_vccnz {lp}''')
    STAMP(7)
    AA('s_setprio 3')
    for T in range(2): AA(f'v_mfma_f32_16x16x32_bf16 v[{76+4*T}:{79+4*T}], v[60:63], v[{96+4*T}:{99+4*T}], 0')
    for T in range(2): AA(f'v_mfma_f32_16x16x32_bf16 v[{76+4*T}:{79+4*T}], v[68:71], v[{104+4*T}:{107+4*T}], v[{76+4*T}:{79+4*T}]')
    AA(f'''s_nop 6
    v_add_f32 v76, v76, v77
    v_add_f32 v80, v80, v81
    v_add_f32 v78, v78, v79
    v_add_f32 v82, v82, v83
    v_add_f32 v76, v76, v28
    v_add_f32 v80, v80, v29
    v_add_f32 v76, v76, v78
    v_add_f32 v80, v80, v82
    s_nop 1
    v_permlane16_swap_b32 v76, v80
    v_add_f32 v56, v76, v80
    v_add_f32 v57, v76, v80
    s_nop 1
    v_permlane32_swap_b32 v56, v57
    s_mov_b32 exec_hi, 0
    buffer_store_dwordx4 v[56:59], v36, s[44:47], s64 offen sc1''')
    STAMP(8)
    A('L_end:')
    dump_stamps(16)
    A('L_exit:')
    AA('s_endpgm')
    A(f'''.section .rodata,"a"
.p2align 6
.amdhsa_kernel {NAME}_kernel
  .amdhsa_next_free_vgpr 160
  .amdhsa_next_free_sgpr 102
  .amdhsa_accum_offset 160
  .amdhsa_group_segment_fixed_size 0
  .amdhsa_kernarg_size 96
  .amdhsa_user_sgpr_count 2
  .amdhsa_user_sgpr_kernarg_segment_ptr 1
  .amdhsa_system_sgpr_workgroup_id_x 1
.end_amdhsa_kernel''')
    return '\n'.join(L)+'\n'

def build_dbg(name, **kw):
    sys.path.insert(0,'cdna_kernels')
    s=gen(debug=True,**kw)
    s+=f'''.amdgpu_metadata
---
amdhsa.version: [1, 2]
amdhsa.kernels:
  - .name: {NAME}_kernel
    .symbol: {NAME}_kernel.kd
    .kernarg_segment_size: 96
    .kernarg_segment_align: 8
    .group_segment_fixed_size: 0
    .private_segment_fixed_size: 0
    .wavefront_size: 64
    .sgpr_count: 102
    .vgpr_count: 160
    .max_flat_workgroup_size: 640
    .args:
      - {{.name: kernargs, .size: 96, .offset: 0, .value_kind: by_value}}
...
.end_amdgpu_metadata
'''
    p='bench/'+name
    open(p+'.s','w').write(s)
    r=subprocess.run(['clang','-x','assembler','-target','amdgcn-amd-amdhsa','-mcpu=gfx950',p+'.s','-o',p+'.co'],capture_output=True,text=True)
    if r.returncode: print(r.stderr[:1500]); sys.exit(1)
    return f'./host {name}.co {NAME}_kernel 256 640 163840 15 16 2560 1 1 > {name}.txt'
if __name__=='__main__':
    open('cdna_kernels/'+NAME+'.s','w').write(gen())
```

```python
import sys
sys.path.insert(0,'gen')
import importlib, gen
def mk(variants):
    cmds=[gen.build_dbg(n,**kw) for n,kw in variants]
    open('run.sh','w').write('\n'.join(cmds)+'\npython3 ana2.py '+' '.join(n+'.txt' for n,_ in variants)+'\n')
    print(', '.join('"bench/%s.co"'%n for n,_ in variants))
if __name__=='__main__':
    mk(eval(sys.argv[1]))
```

```python
import sys, subprocess
NAME='gated_mix__sliding_block_cached__dense_activation_relu__decode'
HDR=open('cdna_kernels/'+NAME+'.s.ref').read().split('; Override launch')[0]

def gen(debug=False, WK=32, WV=40, psleep=2, ntkv=True, ntw=True, rotmul=4, qstart=72, sstart=264, opts=()):
    L=[]; A=L.append
    def AA(s):
        for x in s.strip().split('\n'): A('    '+x.strip())
    WQ_STG=131072; W1_STG=WQ_STG+14336
    SM=W1_STG+14336
    WO_STG=WQ_STG
    QB=0; PB=1056; MW=2112; LW=2176; MG=2240; FS=2248; G1=2256; TG=2272; GW=2816
    HB=2304; HZ=2560; F_PROG=2576; F_QH=2584; F_S1=2588; F_S2=2592; F_SC=2596; F_WS=2600; F_O=2604; F_KC=2608; F_H2=2640; F_H=2644; F_AI=2648; G0=2656; FS2=3840; OA=WQ_STG+24576
    LDS=163840
    QBUF=0x200000; HBUF=0x240000; SBUF=0x28000; OBUF=0x30000; FBUF=0x100000; WSN=0x260000
    NK=' nt' if ntkv else ''; NW=' nt' if ntw else ''
    cnt=[0]
    FF=0 if 'noffn' in opts else 14
    def lab(p): cnt[0]+=1; return f'L_{p}{cnt[0]}'
    def STAMP(k):
        if debug or 'hd' in opts: A(f'    s_memrealtime s[{68+2*k}:{69+2*k}]')
    def srd(d,p,n): AA(f's_mov_b32 s{d}, s{p}\ns_mov_b32 s{d+1}, s{p+1}\ns_mov_b32 s{d+2}, {n}\ns_mov_b32 s{d+3}, 0x20000')
    def spin(off,thr,vf,vt,sleep=0):
        l=lab('sp')
        A(l+':')
        AA(f'ds_read_b32 {vt}, {vf} offset:{off}\ns_sub_u32 s43, s43, 1\ns_cbranch_scc1 L_end')
        if sleep: AA(f's_sleep {sleep}')
        AA(f's_waitcnt lgkmcnt(0)\nv_readfirstlane_b32 s42, {vt}\ns_cmp_ge_u32 s42, {thr}\ns_cbranch_scc0 {l}')
    def ldsadd(off,vf,vone):
        AA(f's_waitcnt lgkmcnt(0)\ns_mov_b64 exec, 1\nds_add_u32 {vf}, {vone} offset:{off}\ns_mov_b64 exec, -1')
    def dpp2(op,a,b,rots):
        for r in rots:
            AA(f's_nop 0\n{op}_dpp {a}, {a}, {a} row_ror:{r} row_mask:0xf bank_mask:0xf\n{op}_dpp {b}, {b}, {b} row_ror:{r} row_mask:0xf bank_mask:0xf')
    def dump_stamps(n):
        if 'hd' in opts:
            AA('''s_memrealtime s[98:99]
            s_cmp_lg_u32 s2, 0
            s_cbranch_scc1 L_exit
            s_cmp_gt_u32 s3, 2
            s_cbranch_scc1 L_exit
            s_waitcnt lgkmcnt(0)
            s_mov_b64 exec, 1
            s_mul_i32 s60, s3, 20
            v_mov_b32 v1, s60
            s_cmp_eq_u32 s3, 0
            s_cselect_b32 s61, s72, s74
            s_cselect_b32 s62, s74, s78
            s_cselect_b32 s63, s78, s84
            s_cmp_eq_u32 s3, 2
            s_cselect_b32 s61, s74, s61
            s_cselect_b32 s62, s80, s62
            s_cselect_b32 s63, s82, s63
            s_sub_u32 s61, s61, s68
            s_sub_u32 s62, s62, s68
            s_sub_u32 s63, s63, s68
            s_sub_u32 s64, s98, s68
            v_mov_b32 v2, s68
            v_mov_b32 v3, s61
            v_mov_b32 v4, s62
            v_mov_b32 v5, s63
            v_mov_b32 v6, s64
            global_store_dword v1, v2, s[36:37]
            global_store_dword v1, v3, s[36:37] offset:4
            global_store_dword v1, v4, s[36:37] offset:8
            global_store_dword v1, v5, s[36:37] offset:12
            global_store_dword v1, v6, s[36:37] offset:16''')
            return
        if not debug: return
        AA(f'''s_waitcnt lgkmcnt(0)
        s_mul_i32 s60, s2, 10
        s_add_u32 s60, s60, s3
        s_lshl_b32 s60, s60, 7
        s_add_u32 s60, s60, 0x10000000
        s_add_u32 s60, s38, s60
        s_addc_u32 s61, s39, 0
        s_mov_b64 exec, -1
        v_mov_b32 v1, 0''')
        for k in range(16):
            AA(f'v_mov_b32 v2, s{68+2*k}\nv_mov_b32 v3, s{69+2*k}\nglobal_store_dwordx2 v1, v[2:3], s[60:61] offset:{8*k}')
    A(HDR+f'; @launch grid=(256,1,1) block=(640,1,1) lds={LDS}')
    A(f'.amdgcn_target "amdgcn-amd-amdhsa--gfx950"\n.text\n.globl {NAME}_kernel\n.p2align 8\n.type {NAME}_kernel,@function\n{NAME}_kernel:')
    if debug or 'hd' in opts:
        for k in range(1,15): AA(f's_mov_b64 s[{68+2*k}:{69+2*k}], 0')
    STAMP(0)
    AA(f'''s_cmp_ge_u32 s2, 256
    s_cbranch_scc1 L_exit
    s_load_dwordx16 s[16:31], s[0:1], 0
    s_load_dwordx8 s[32:39], s[0:1], 64
    v_lshrrev_b32 v1, 6, v0
    v_and_b32 v0, 63, v0
    v_mov_b32 v2, {SM}
    v_readfirstlane_b32 s3, v1
    v_mov_b32 v5, 0
    v_lshl_add_u32 v7, v0, 2, v2
    s_cmp_lg_u32 s3, 9
    s_cbranch_scc1 L_noinit
    ds_write_b32 v7, v5 offset:{HB}
    ds_write_b32 v7, v5 offset:{HB+256}
    s_waitcnt lgkmcnt(0)
    L_noinit:
    s_and_b32 s4, s2, 7
    s_lshr_b32 s5, s2, 3
    s_and_b32 s6, s5, 3
    s_lshr_b32 s7, s5, 2
    s_mov_b32 s43, 0x400000
    s_cmp_eq_u32 s3, 1
    s_cbranch_scc1 L_aux
    s_cmp_gt_u32 s3, 1
    s_cbranch_scc1 L_comp''')
    AA(f'''s_setprio {2 if 'ap3' in opts else 3}
    v_lshlrev_b32 v1, 4, v0
    v_lshrrev_b32 v3, 5, v0
    v_lshlrev_b32 v4, 4, v3
    v_xor_b32 v8, v1, v4
    v_lshlrev_b32 v4, 5, v3
    v_xor_b32 v16, v1, v4''')
    for i in range(1,8): AA(f'v_xor_b32 v{8+i}, {i<<5}, v8')
    for i in range(1,4): AA(f'v_xor_b32 v{16+i}, {i<<6}, v16')
    AA(f'''s_lshl_b32 s62, s6, 3
    s_add_u32 s62, s62, s4
    s_lshl_b32 s62, s62, 22
    s_lshl_b32 s63, s7, 17
    s_add_u32 s62, s62, s63
    s_add_u32 s62, s62, 0x300000
    s_mul_i32 s63, s5, {rotmul*1024}
    s_and_b32 s63, s63, 0x1ffff
    s_mov_b32 s64, 0
    s_mov_b32 s14, 0
    s_waitcnt lgkmcnt(0)''')
    srd(56,18,134217728); srd(8,20,134217728)
    def prog(W):
        AA(f's_add_u32 s64, s64, 4\\ns_sub_u32 s15, s64, {W}\\ns_max_i32 s14, s14, s15\\nv_mov_b32 v3, s14\\ns_waitcnt vmcnt({W})\\nds_write_b32 v2, v3 offset:{F_PROG}'.replace('\\n','\n'))
    AA('s_barrier')
    STAMP(1)
    def kvloop(sr,vb,per,tag,check,W,end):
        l=lab(tag); A(l+':')
        check()
        for hgrp in range(2):
            AA(f's_add_u32 s66, s62, s67\ns_add_u32 s67, s67, 4096\ns_and_b32 s67, s67, 0x1ffff')
            for k in range(4): AA(f'buffer_load_dwordx4 v{vb+(hgrp*4+k)%per}, s[{sr}:{sr+3}], s66 offen offset:{k*1024}{NK} lds')
            AA('s_add_u32 m0, m0, 4096')
            prog(W)
        AA(f's_add_u32 s65, s65, 1\ns_cmp_lt_u32 s65, {end}\ns_cbranch_scc1 {l}')
        return l
    def vcheck():
        l=lab('vc')
        AA(f's_bitcmp1_b32 s65, 0\ns_cbranch_scc1 {l}\ns_lshl_b32 s66, s65, 1\nv_add_u32 v5, s66, v2')
        spin(F_KC,1,'v5','v4')
        A(l+':')
    AA(f's_mov_b32 m0, 0\ns_mov_b32 s65, 0\ns_mov_b32 s67, s63')
    kvloop(56,8,8,'k',lambda:None,WK,16)
    STAMP(2)
    srd(48,24,3670016); srd(52,30,1605632)
    AA(f'''s_lshl_b32 s60, s4, 9
    s_lshl_b32 s61, s7, 5
    s_add_u32 s60, s60, s61
    s_mul_i32 s60, s60, 896
    s_lshl_b32 s61, s4, 3
    s_add_u32 s61, s61, s7
    s_mul_i32 s61, s61, 25088
    s_lshl_b32 s66, s6, 8
    s_add_u32 s60, s60, s66
    s_add_u32 s61, s61, s66
    v_lshrrev_b32 v3, 4, v0
    v_and_b32 v4, 15, v0
    v_mul_u32_u24 v1, 896, v3
    v_lshl_add_u32 v1, v4, 4, v1
    s_cmp_eq_u32 s6, 3
    s_cselect_b32 s66, 8, 16
    v_cmp_gt_u32 vcc, s66, v4
    v_mov_b32 v3, 0x8000000
    v_cndmask_b32 v1, v3, v1, vcc
    s_mov_b32 m0, 0
    s_mov_b32 s65, 0
    s_mov_b32 s67, s63
    s_mov_b32 s13, 8''')
    lv=kvloop(8,16,4,'v',vcheck,WV,'s13')
    AA('s_cmp_eq_u32 s65, 16\ns_cbranch_scc1 L_vdone')
    STAMP(3)
    spin(F_QH if 'oldqh' in opts else F_WS,1,'v2','v4')
    AA(f's_mov_b32 m0, {WO_STG}')
    for blk,(sr,so) in enumerate(((48,'s60'),(48,'s60'),(52,'s61'))):
        l=lab('ld')
        if blk==1: AA(f's_add_u32 s60, s60, {256*896-28672}')
        AA(f's_mov_b32 s12, 2')
        A(l+':')
        for k in range(0 if 'nowo' in opts else 4): AA(f'buffer_load_dwordx4 v1, s[{sr}:{sr+3}], {so} offen{NW} lds\ns_add_u32 m0, m0, 1024\ns_add_u32 {so}, {so}, 3584')
        prog(WV)
        AA(f's_sub_u32 s12, s12, 1\ns_cmp_lg_u32 s12, 0\ns_cbranch_scc1 {l}')
    AA(f's_mov_b32 m0, 0x10000\ns_mov_b32 s13, 16\ns_branch {lv}')
    A('L_vdone:')
    STAMP(4)
    w=WV
    while w>0:
        w-=4
        if w<=16 or w%16==0: AA(f'v_mov_b32 v3, {280-w}\ns_waitcnt vmcnt({w})\nds_write_b32 v2, v3 offset:{F_PROG}')
    STAMP(5)
    AA('s_branch L_end')
    A('L_aux:')
    AA(f'''s_setprio {3 if 'ap3' in opts else 2}
    v_and_b32 v3, 3, v0
    v_lshrrev_b32 v4, 4, v0
    v_mul_u32_u24 v5, 896, v3
    v_lshl_add_u32 v5, v4, 4, v5
    v_lshrrev_b32 v6, 3, v0
    v_and_b32 v7, 3, v6
    v_lshlrev_b32 v7, 1, v7
    v_and_b32 v8, 7, v0
    v_xor_b32 v7, v7, v8
    v_lshlrev_b32 v7, 4, v7
    v_lshlrev_b32 v66, 4, v0
    s_and_b32 s60, s5, 7
    s_lshr_b32 s61, s5, 3
    s_mul_i32 s62, s4, 7
    s_add_u32 s62, s62, s5
    s_sub_u32 s62, s62, 16
    s_lshr_b32 s63, s62, 1
    s_and_b32 s62, s62, 1
    s_lshl_b32 s64, s4, 3
    s_add_u32 s64, s64, s60
    s_cmp_lt_u32 s5, 16
    s_cselect_b32 s61, s61, s62
    s_cselect_b32 s63, s64, s63
    s_mov_b32 s62, 3584
    s_cselect_b32 s62, 0x2000, s62
    s_cselect_b32 s65, 16, 15
    s_mul_i32 s60, s61, s62
    s_mul_i32 s60, s60, 224
    s_lshl_b32 s64, s63, 7
    s_add_u32 s60, s60, s64
    v_mul_lo_u32 v140, v6, s62
    v_add_u32 v140, v140, v7
    v_xor_b32 v141, 32, v140
    s_mov_b32 m0, {WQ_STG}
    s_mov_b32 s12, 14
    s_waitcnt lgkmcnt(0)
    s_load_dwordx2 s[40:41], s[38:39], 0''')
    srd(48,22,3670016); srd(56,28,1605632)
    AA(f"s_cmp_ge_u32 s5, {0 if 'noproj' in opts else 23}\ns_cbranch_scc1 L_pl")
    AA('s_cmp_ge_u32 s5, 16\ns_cbranch_scc1 L_pf')
    for nm,sr,st in (('L_pq',48,8192),('L_pf',56,3584)):
        A(nm+':')
        for r in (140,141): AA(f'buffer_load_dwordx4 v{r}, s[{sr}:{sr+3}], s60 offen{NW} lds\ns_add_u32 m0, m0, 1024\ns_add_u32 s60, s60, {8*st}')
        AA(f's_sub_u32 s12, s12, 1\ns_cmp_lg_u32 s12, 0\ns_cbranch_scc1 {nm}')
        if nm=='L_pq': AA('s_branch L_pl')
    A('L_pl:')
    srd(52,16,3584); srd(8,32,896); srd(44,38,WSN)
    AA('s_mul_i32 s66, s61, 448\ns_sub_u32 s67, 448, s66')
    for m in range(14):
        AA(f"buffer_load_dwordx4 v[{8+4*m}:{11+4*m}], v5, s[52:55], {'s66' if m<7 else 's67'} offen offset:{64*(m%7)}")
    AA(f'''s_mov_b32 m0, {SM+GW}
    v_lshl_add_u32 v68, v4, 4, v2
    buffer_load_dwordx4 v66, s[8:11], 0 offen lds
    s_barrier
    v_add_u32 v69, s67, v68
    v_add_u32 v68, s66, v68
    v_bfe_u32 v6, v0, 2, 2
    v_and_b32 v7, 1, v4
    v_xor_b32 v7, v7, v6
    v_lshlrev_b32 v7, 5, v7
    v_lshl_add_u32 v7, v6, 7, v7
    v_lshl_add_u32 v7, v4, 10, v7
    v_lshl_add_u32 v7, v3, 3, v7
    v_add_u32 v142, {WQ_STG}, v7
    v_xor_b32 v143, 32, v142
    v_xor_b32 v144, 64, v142
    v_xor_b32 v145, 0x60, v142
    v_lshlrev_b32 v146, s65, v3
    v_lshl_add_u32 v146, v6, 6, v146
    v_lshl_add_u32 v146, v4, 4, v146
    v_cmp_eq_u32 s[14:15], 1, v6
    v_cmp_eq_u32 s[90:91], 2, v6
    v_cmp_eq_u32 s[92:93], 3, v6
    s_lshl_b32 s60, s4, 13
    s_lshl_b32 s64, s61, 12
    s_add_u32 s60, s60, s64
    s_and_b32 s64, s63, 7
    s_lshl_b32 s64, s64, 9
    s_add_u32 s60, s60, s64
    s_add_u32 s60, s60, {QBUF}
    s_lshl_b32 s64, s61, 14
    s_lshl_b32 s63, s63, 9
    s_add_u32 s64, s64, s63
    s_add_u32 s64, s64, {HBUF}
    s_cmp_lt_u32 s5, 16
    s_cselect_b32 s60, s60, s64''')
    STAMP(1)
    AA('s_waitcnt vmcnt(0) lgkmcnt(0)\ns_add_u32 s40, s40, 1\ns_addc_u32 s41, s41, 0\nv_mov_b32 v138, s40\nv_mov_b32 v139, s41\nv_mov_b32 v85, 1')
    STAMP(2)
    AA('s_cmp_ge_u32 s5, 23\ns_cbranch_scc1 L_nop')
    for cp in range(2):
        for m in range(7):
            for c in range(2):
                b=80+(m*2+c)*4
                AA(f'ds_read_b64_tr_b16 v[{b}:{b+1}], v{142+cp*2+c} offset:{m*4096}\nds_read_b64_tr_b16 v[{b+2}:{b+3}], v{142+cp*2+c} offset:{m*4096+512}')
        for m in range(7):
            if m in (0,4,5,6): AA(f's_waitcnt lgkmcnt({ {0:12,4:8,5:4,6:0}[m] })')
            for c in range(2):
                b=80+(m*2+c)*4; d=148+(c*4) if cp==0 else 70+c*4
                AA(f"v_mfma_f32_16x16x32_bf16 v[{d}:{d+3}], v[{b}:{b+3}], v[{8+4*m}:{11+4*m}], {'0' if m==0 else f'v[{d}:{d+3}]'}")
    AA(f'v_mov_b32 v85, 1\nds_write_b32 v2, v85 offset:{F_WS}\ns_nop 4')
    for r in range(4): AA(f'v_cndmask_b32 v{148+r}, v{148+r}, v{152+r}, s[14:15]')
    for r in range(4): AA(f'v_cndmask_b32 v{148+r}, v{148+r}, v{70+r}, s[90:91]')
    for r in range(4): AA(f'v_cndmask_b32 v{148+r}, v{148+r}, v{74+r}, s[92:93]')
    AA(f'''v_mov_b32 v136, v150
    v_mov_b32 v137, v151
    v_mov_b32 v150, s40
    v_mov_b32 v151, s41
    buffer_store_dwordx4 v[148:151], v146, s[44:47], s60 offen sc1
    buffer_store_dwordx4 v[136:139], v146, s[44:47], s60 offen offset:256 sc1
    L_nop:
    ds_write_b32 v2, v85 offset:{F_WS}''')
    STAMP(3)
    if 'bare' in opts: AA('s_branch L_end')
    for m in range(14): AA(f'ds_read_b128 v[{80+4*m}:{83+4*m}], v{68 if m<7 else 69} offset:{GW+64*(m%7)}')
    AA('s_waitcnt lgkmcnt(0)')
    for m in range(14): AA(f"v_mfma_f32_16x16x32_bf16 v[76:79], v[{80+4*m}:{83+4*m}], v[{8+4*m}:{11+4*m}], {'0' if m==0 else 'v[76:79]'}")
    AA(f'''v_lshl_add_u32 v82, v3, 2, v2
    s_nop 6
    v_mov_b32 v80, v76
    v_cvt_pk_bf16_f32 v80, v80, v80
    v_lshlrev_b32 v80, 16, v80
    v_mul_f32 v80, 0xbfb8aa3b, v80
    v_exp_f32 v80, v80
    s_nop 0
    v_add_f32 v80, 1.0, v80
    v_rcp_f32 v80, v80
    s_nop 0
    v_cvt_pk_bf16_f32 v80, v80, v80
    v_lshlrev_b32 v80, 16, v80
    v_sub_f32 v81, 1.0, v80
    v_cvt_pk_bf16_f32 v81, v81, v81
    v_lshlrev_b32 v81, 16, v81
    ds_write_b32 v82, v81 offset:{G1}
    ds_write_b32 v82, v80 offset:{G0}
    ds_write_b64 v2, v[138:139] offset:{TG}
    s_lshl_b32 s60, s6, 3
    s_add_u32 s60, s60, s4
    s_lshl_b32 s62, s4, {12 if 'sl' in opts else 10}
    s_add_u32 s62, s62, {SBUF}
    s_lshl_b32 s60, s60, 13
    s_add_u32 s60, s60, {QBUF}
    s_add_u32 s63, s60, 4096
    s_lshl_b32 s61, s4, 3
    s_add_u32 s61, s61, s7
    s_mul_i32 s61, s61, 7
    v_bfe_u32 v82, v0, 1, 3
    v_min_u32 v82, 6, v82
    v_add_u32 v83, s61, v82
    v_and_b32 v84, 15, v83
    v_lshrrev_b32 v83, 4, v83
    v_lshlrev_b32 v83, 9, v83
    v_lshl_add_u32 v83, v84, 4, v83
    v_and_b32 v84, 1, v0
    v_lshl_add_u32 v83, v84, 8, v83
    v_lshl_add_u32 v83, v4, 15, v83
    v_lshl_add_u32 v82, v82, 3, v2
    v_lshl_add_u32 v82, v4, 6, v82
    v_lshl_add_u32 v82, v84, 2, v82
    v_and_b32 v84, 15, v0
    v_lshl_add_u32 v84, v84, 3, v2
    v_and_b32 v85, 1, v4
    v_lshl_add_u32 v84, v85, 2, v84
    v_lshrrev_b32 v85, 5, v0
    v_lshl_add_u32 v84, v85, 7, v84
    v_mov_b32 v85, 1
    s_mov_b32 s61, {HBUF}
    s_mov_b32 s59, {HBUF+16384}''')
    if qstart: spin(F_PROG,qstart,'v2','v86',sleep=2)
    STAMP(4)
    lp=lab('pq'); A(lp+':')
    for t in range(8): AA(f"buffer_load_dwordx4 v[{88+4*t}:{91+4*t}], v66, s[44:47], {'s60' if t<4 else 's63'} offen offset:{(t&3)*1024} sc1")
    AA(f's_sub_u32 s43, s43, 16\ns_cbranch_scc1 L_end\ns_sleep {psleep}\ns_mov_b64 s[64:65], 0')
    for t in range(8): AA(f's_waitcnt vmcnt({7-t})\nv_cmp_ne_u64 vcc, s[40:41], v[{90+4*t}:{91+4*t}]\ns_or_b64 s[64:65], s[64:65], vcc')
    AA(f's_cbranch_scc1 {lp}')
    for t in range(4):
        AA(f'''v_add_f32 v{88+4*t}, v{88+4*t}, v{104+4*t}
        v_add_f32 v{89+4*t}, v{89+4*t}, v{105+4*t}
        v_cvt_pk_bf16_f32 v{88+4*t}, v{88+4*t}, v{89+4*t}
        ds_write_b32 v84, v{88+4*t} offset:{QB+(t>>1)*528+(t&1)*256}''')
    AA(f's_waitcnt lgkmcnt(0)\nds_write_b32 v2, v85 offset:{F_QH}')
    STAMP(5)
    if 'x1' in opts: AA('s_branch L_end')
    spin(F_S2,8,'v2','v86',sleep=1)
    STAMP(6)
    AA(f'''v_and_b32 v86, 15, v0
    v_lshl_add_u32 v87, v86, 2, v2
    v_and_b32 v88, 1, v0
    v_lshl_add_u32 v88, v88, 2, v2
    ds_read_b32 v93, v87 offset:{LW}
    ds_read_b32 v92, v88 offset:{MG}
    v_mov_b32 v94, s40
    v_mov_b32 v95, s41
    v_lshlrev_b32 v87, 4, v86
    s_lshl_b32 s63, s7, {7 if 'sl' in opts else 5}
    s_add_u32 s63, s63, s62
    s_lshl_b32 s64, s6, {10 if 'sl' in opts else 8}
    s_add_u32 s63, s63, s64
    v_lshl_add_u32 v101, v4, 2, v2
    ds_read_b32 v101, v101 offset:{G0}
    v_lshrrev_b32 v102, 1, v0
    v_lshl_add_u32 v102, v102, 2, v2
    v_and_b32 v103, 1, v0
    v_lshl_add_u32 v102, v103, 7, v102
    v_lshrrev_b32 v104, 1, v0
    v_lshlrev_b32 v104, {7 if 'sl' in opts else 5}, v104
    v_lshl_add_u32 v104, v103, 4, v104
    s_waitcnt lgkmcnt(0)''')
    for r in (8,4,2): AA(f'v_add_f32_dpp v93, v93, v93 row_ror:{r} row_mask:0xf bank_mask:0xf\ns_nop 1')
    AA(f'''s_mov_b64 exec, 3
    buffer_store_dwordx4 v[92:95], v87, s[44:47], s63 offen sc1
    s_mov_b64 exec, -1''')
    spin(F_PROG,sstart,'v2','v86',sleep=2)
    lp=lab('ps'); A(lp+':')
    AA(f'''buffer_load_dwordx4 v[96:99], v104, s[44:47], s62 offen sc1
    buffer_load_dwordx4 v[120:123], v83, s[44:47], s61 offen sc1
    buffer_load_dwordx4 v[124:127], v83, s[44:47], s59 offen sc1
    s_sub_u32 s43, s43, 16
    s_cbranch_scc1 L_end
    s_sleep {psleep}
    s_waitcnt vmcnt(0)
    v_cmp_ne_u64 vcc, s[40:41], v[98:99]
    v_cmp_ne_u64 s[64:65], s[40:41], v[122:123]
    v_cmp_ne_u64 s[66:67], s[40:41], v[126:127]
    s_or_b64 vcc, vcc, s[64:65]
    s_or_b64 vcc, vcc, s[66:67]
    s_cbranch_vccnz {lp}
    v_add_f32 v120, v120, v124
    v_add_f32 v121, v121, v125
    v_max_f32 v120, 0, v120
    v_max_f32 v121, 0, v121
    v_cvt_pk_bf16_f32 v120, v120, v121
    ds_write_b32 v82, v120 offset:{HB}
    v_mov_b32 v100, v96
    s_mov_b32 s64, 0x3db8aa3b
    s_nop 0''')
    for r in (8,4,2): AA(f'v_max_f32_dpp v100, v100, v100 row_ror:{r} row_mask:0xf bank_mask:0xf\ns_nop 1')
    AA(f'''v_sub_f32 v96, v96, v100
    v_mul_f32 v96, s64, v96
    v_exp_f32 v96, v96
    s_nop 0
    v_mul_f32 v92, v101, v96
    v_mul_f32 v96, v96, v97
    s_nop 0''')
    for r in (8,4,2): AA(f'v_add_f32_dpp v96, v96, v96 row_ror:{r} row_mask:0xf bank_mask:0xf\ns_nop 1')
    AA(f'''v_rcp_f32 v96, v96
    s_nop 0
    v_mul_f32 v92, v92, v96
    ds_write_b32 v102, v92 offset:{FS2}
    s_waitcnt lgkmcnt(0)
    ds_write_b32 v2, v85 offset:{F_SC}''')
    STAMP(7)
    if 'x2' in opts or 'x3' in opts: AA('s_branch L_end')
    AA(f'''s_cmp_lt_u32 s4, 6
    s_cselect_b32 s62, 32, 16
    s_cmp_ge_u32 s5, s62
    s_cbranch_scc1 L_end
    s_lshl_b32 s62, s4, 17
    s_lshl_b32 s63, s5, 6
    s_add_u32 s62, s62, s63
    s_add_u32 s62, s62, {FBUF}
    s_add_u32 s63, s62, 0x8000
    s_add_u32 s64, s62, 0x10000
    s_add_u32 s65, s62, 0x18000
    v_lshrrev_b32 v86, 2, v0
    v_lshlrev_b32 v86, 11, v86
    v_lshl_add_u32 v86, v3, 4, v86
    s_and_b32 s60, s2, 1
    s_mul_i32 s60, s60, 1792
    s_lshr_b32 s66, s4, 1
    s_lshl_b32 s66, s66, 8
    s_add_u32 s60, s60, s66
    s_lshl_b32 s66, s5, 3
    s_add_u32 s60, s60, s66
    v_lshlrev_b32 v87, 1, v3''')
    srd(48,34,3584)
    spin(F_H2,8,'v2','v85',sleep=1)
    lp=lab('pf'); A(lp+':')
    AA(f'''buffer_load_dwordx4 v[88:91], v86, s[44:47], s62 offen sc1
    buffer_load_dwordx4 v[92:95], v86, s[44:47], s63 offen sc1
    buffer_load_dwordx4 v[96:99], v86, s[44:47], s64 offen sc1
    buffer_load_dwordx4 v[100:103], v86, s[44:47], s65 offen sc1
    s_sub_u32 s43, s43, 16
    s_cbranch_scc1 L_end
    s_sleep {psleep}
    s_waitcnt vmcnt(0)
    v_cmp_ne_u64 vcc, s[40:41], v[90:91]
    v_cmp_ne_u64 s[52:53], s[40:41], v[94:95]
    v_cmp_ne_u64 s[54:55], s[40:41], v[98:99]
    v_cmp_ne_u64 s[56:57], s[40:41], v[102:103]
    s_or_b64 vcc, vcc, s[52:53]
    s_or_b64 s[54:55], s[54:55], s[56:57]
    s_or_b64 vcc, vcc, s[54:55]
    s_cbranch_vccnz {lp}''')
    STAMP(8)
    AA('''v_add_f32 v88, v88, v92
    v_add_f32 v89, v89, v93
    v_add_f32 v96, v96, v100
    v_add_f32 v97, v97, v101
    v_add_f32 v88, v88, v96
    v_add_f32 v89, v89, v97''')
    dpp2('v_add_f32','v88','v89',(4,8))
    AA(f'''v_mov_b32 v90, v88
    v_mov_b32 v91, v89
    s_nop 0
    v_permlane16_swap_b32 v88, v90
    v_permlane16_swap_b32 v89, v91
    v_add_f32 v88, v88, v90
    v_add_f32 v89, v89, v91
    v_mov_b32 v90, v88
    v_mov_b32 v91, v89
    s_nop 0
    v_permlane32_swap_b32 v88, v90
    v_permlane32_swap_b32 v89, v91
    v_add_f32 v88, v88, v90
    v_add_f32 v89, v89, v91
    v_cvt_pk_bf16_f32 v88, v88, v89
    s_mov_b64 exec, 15
    buffer_store_short v88, v87, s[48:51], s60 offen
    buffer_store_short_d16_hi v88, v87, s[48:51], s60 offen offset:896
    s_cmp_lg_u32 s2, 0
    s_cbranch_scc1 L_end
    s_mov_b64 exec, 1
    v_mov_b32 v86, 0
    buffer_store_dwordx2 v[90:91], v86, s[44:47], 0 offen''' .replace('buffer_store_dwordx2 v[90:91]','v_mov_b32 v90, s40\nv_mov_b32 v91, s41\nbuffer_store_dwordx2 v[90:91]'))
    AA('s_branch L_end')
    A('L_comp:')
    AA(f'''s_sub_u32 s60, s3, 2
    v_and_b32 v3, 15, v0
    v_lshrrev_b32 v4, 4, v0
    v_mov_b32 v1, 1
    v_lshrrev_b32 v8, 2, v0
    v_and_b32 v9, 3, v0
    v_and_b32 v10, 3, v8
    v_lshl_add_u32 v10, v4, 3, v10
    v_lshlrev_b32 v10, 8, v10
    v_lshl_add_u32 v10, v9, 3, v10
    s_lshr_b32 s61, s60, 1
    s_lshl_b32 s61, s61, 6
    s_add_u32 s61, s61, {WO_STG}
    v_add_u32 v10, s61, v10
    v_xor_b32 v11, v3, v4
    v_lshlrev_b32 v11, 4, v11
    v_lshl_add_u32 v11, v3, 9, v11
    s_lshl_b32 s61, s60, 14
    v_add_u32 v11, s61, v11
    v_xor_b32 v12, 64, v11
    v_xor_b32 v13, 128, v11
    v_xor_b32 v14, 192, v11
    v_and_b32 v15, 7, v8
    v_lshlrev_b32 v15, 1, v15
    v_bfe_u32 v16, v0, 1, 1
    s_lshl_b32 s61, s60, 2
    v_add_u32 v16, s61, v16
    v_xor_b32 v15, v15, v16
    v_lshlrev_b32 v15, 4, v15
    v_lshl_add_u32 v15, v8, 9, v15
    v_and_b32 v16, 1, v0
    v_lshl_add_u32 v15, v16, 3, v15
    v_mul_u32_u24 v17, 528, v16
    v_lshl_add_u32 v17, v4, 4, v17
    v_add_u32 v17, v2, v17
    v_lshl_add_u32 v18, v16, 2, v2
    v_xor_b32 v16, 32, v15
    s_waitcnt lgkmcnt(0)''')
    srd(44,38,WSN)
    if 'tlb' in opts:
        AA(f'''s_cmp_lg_u32 s60, 7
        s_cbranch_scc1 L_notlb
        s_lshl_b32 s62, s6, 3
        s_add_u32 s62, s62, s4
        s_lshl_b32 s62, s62, 22
        s_lshl_b32 s63, s7, 17
        s_add_u32 s62, s62, s63
        s_add_u32 s62, s62, 0x300000
        s_load_dword s94, s[20:21], s62
        s_add_u32 s62, s62, 0x10000
        s_load_dword s94, s[20:21], s62
        s_load_dword s94, s[18:19], s62
        s_lshl_b32 s62, s4, 9
        s_lshl_b32 s63, s7, 5
        s_add_u32 s62, s62, s63
        s_mul_i32 s62, s62, 896
        s_load_dword s94, s[24:25], s62
        s_add_u32 s62, s62, 27776
        s_load_dword s94, s[24:25], s62
        s_add_u32 s62, s62, {256*896-27776}
        s_load_dword s94, s[24:25], s62
        s_add_u32 s62, s62, 27776
        s_load_dword s94, s[24:25], s62
        s_lshl_b32 s62, s4, 3
        s_add_u32 s62, s62, s7
        s_mul_i32 s62, s62, 25088
        s_load_dword s94, s[30:31], s62
        s_add_u32 s62, s62, 24192
        s_load_dword s94, s[30:31], s62
        s_load_dword s94, s[34:35], 0
        s_lshl_b32 s62, s4, 16
        s_add_u32 s62, s62, {OBUF}
        s_load_dword s94, s[38:39], s62
        s_lshl_b32 s62, s4, 17
        s_add_u32 s62, s62, {FBUF}
        s_load_dword s94, s[38:39], s62
        s_add_u32 s62, s62, 0x10000
        s_load_dword s94, s[38:39], s62
        s_lshl_b32 s62, s6, 18
        s_lshl_b32 s63, s4, 14
        s_add_u32 s62, s62, s63
        s_add_u32 s62, s62, {FBUF}
        s_load_dword s94, s[38:39], s62
        s_add_u32 s62, s62, 0x20000
        s_load_dword s94, s[38:39], s62
        s_lshl_b32 s62, s6, 16
        s_add_u32 s62, s62, {QBUF}
        s_load_dword s94, s[38:39], s62
        s_lshl_b32 s62, s6, 15
        s_add_u32 s62, s62, {HBUF}
        s_load_dword s94, s[38:39], s62
        s_load_dword s94, s[38:39], {SBUF}
        L_notlb:''')
    AA(f'''s_lshl_b32 s61, s60, 4
    s_add_u32 s61, s61, 16
    s_barrier
    s_setprio 1''')
    spin(F_PROG,'s61','v2','v19',sleep=2)
    STAMP(2)
    for t in range(2):
        for m in range(8):
            b=32+(t*8+m)*4
            AA(f'ds_read_b128 v[{b}:{b+3}], v{11+(m&3)} offset:{t*8192+(m>>2)*256}')
    AA(f'''s_lshl_b32 s62, s60, 2
    v_add_u32 v19, s62, v2
    s_and_b32 s59, s60, 1
    v_and_b32 v5, 7, v0
    v_cmp_eq_u32 vcc, 0, v5
    v_lshlrev_b32 v5, 4, v4
    v_lshl_add_u32 v5, v3, 3, v5
    s_lshl_b32 s58, s59, 7
    v_add_u32 v5, s58, v5
    v_mov_b32 v21, {HZ-HB}
    v_cndmask_b32 v5, v21, v5, vcc
    v_add_u32 v5, v2, v5
    v_lshrrev_b32 v8, 1, v4
    v_lshl_add_u32 v8, v8, 2, v2
    s_lshl_b32 s58, s59, 3
    v_add_u32 v8, s58, v8
    s_waitcnt lgkmcnt(0)
    ds_write_b32 v19, v1 offset:{F_KC}''')
    if 'bare' in opts: AA('s_branch L_end')
    spin(F_QH,1,'v2','v19',sleep=1)
    STAMP(3)
    AA(f'ds_read_b64 v[6:7], v2 offset:{TG}')
    for m in range(8): AA(f'ds_read_b128 v[{128+4*m}:{131+4*m}], v17 offset:{QB+m*64}')
    for m in range(8):
        AA(f's_waitcnt lgkmcnt({7-m})')
        for t in range(2):
            b=32+(t*8+m)*4; d=20+t*4
            c='0' if m==0 else f'v[{d}:{d+3}]'
            AA(f'v_mfma_f32_16x16x32_bf16 v[{d}:{d+3}], v[{128+4*m}:{131+4*m}], v[{b}:{b+3}], {c}')
    AA(f'''v_readfirstlane_b32 s40, v6
    v_readfirstlane_b32 s41, v7
    s_lshl_b32 s62, s60, 3
    v_add_u32 v19, s62, v2
    v_and_b32 v32, 7, v0
    v_lshl_add_u32 v32, v32, 3, v2
    s_mov_b32 s63, 0x3db8aa3b
    s_nop 3
    v_cvt_pk_bf16_f32 v20, v20, v21
    v_cvt_pk_bf16_f32 v24, v24, v25
    v_and_b32 v21, 0xffff0000, v20
    v_lshlrev_b32 v20, 16, v20
    v_and_b32 v25, 0xffff0000, v24
    v_lshlrev_b32 v24, 16, v24
    v_max_f32 v22, v20, v24
    v_max_f32 v23, v21, v25''')
    dpp2('v_max_f32','v22','v23',(8,4,2,1))
    AA(f'ds_write_b64 v19, v[22:23] offset:{MW}')
    ldsadd(F_S1,'v2','v1')
    spin(F_S1,8,'v2','v33')
    AA(f'ds_read_b64 v[22:23], v32 offset:{MW}\ns_waitcnt lgkmcnt(0)')
    dpp2('v_max_f32','v22','v23',(4,2,1))
    AA(f'''v_lshrrev_b32 v34, 2, v3
    v_lshlrev_b32 v34, 4, v34
    v_lshl_add_u32 v34, v9, 1, v34
    s_lshl_b32 s62, s60, 6
    v_add3_u32 v34, v34, s62, v2
    ds_write_b64 v2, v[22:23] offset:{MG}
    v_sub_f32 v20, v20, v22
    v_sub_f32 v21, v21, v23
    v_sub_f32 v24, v24, v22
    v_sub_f32 v25, v25, v23
    v_mul_f32 v20, s63, v20
    v_mul_f32 v21, s63, v21
    v_mul_f32 v24, s63, v24
    v_mul_f32 v25, s63, v25
    v_exp_f32 v20, v20
    v_exp_f32 v21, v21
    v_exp_f32 v24, v24
    v_exp_f32 v25, v25
    s_nop 0
    v_add_f32 v22, v20, v24
    v_add_f32 v23, v21, v25
    v_cvt_pk_bf16_f32 v20, v20, v21
    v_cvt_pk_bf16_f32 v24, v24, v25
    s_mov_b64 exec, 0xffff
    ds_write_b16 v34, v20 offset:{PB}
    ds_write_b16_d16_hi v34, v20 offset:{PB+528}
    ds_write_b16 v34, v24 offset:{PB+8}
    ds_write_b16_d16_hi v34, v24 offset:{PB+536}
    s_mov_b64 exec, -1''')
    dpp2('v_add_f32','v22','v23',(8,4,2,1))
    AA(f'ds_write_b64 v19, v[22:23] offset:{LW}')
    ldsadd(F_S2,'v2','v1')
    spin(F_S2,8,'v2','v33')
    STAMP(4)
    if 'x2' in opts or 'x1' in opts: AA('s_branch L_end')
    for ks in range(8): AA(f'ds_read_b128 v[{128+4*ks}:{131+4*ks}], v17 offset:{PB+ks*64}')
    AA(f'''v_add_u32 v32, 0x10000, v15
    v_add_u32 v33, 0x10000, v16
    v_and_b32 v34, 1, v0
    v_lshlrev_b32 v34, 1, v34
    v_bfe_u32 v35, v0, 1, 1
    v_add_u32 v34, v34, v35
    v_lshl_add_u32 v34, v34, 2, v4
    v_lshlrev_b32 v34, 4, v34
    v_and_b32 v35, 7, v3
    v_xor_b32 v35, v35, v4
    v_lshlrev_b32 v35, 4, v35
    v_lshl_add_u32 v35, v3, 7, v35
    s_lshl_b32 s62, s59, 11
    s_add_u32 s62, s62, {OA}
    v_add_u32 v35, s62, v35
    v_xor_b32 v38, 64, v35
    s_lshl_b32 s62, s60, 2
    v_add_u32 v39, s62, v4
    v_and_b32 v30, 7, v39
    v_lshrrev_b32 v31, 1, v3
    v_xor_b32 v30, v30, v31
    v_lshlrev_b32 v30, 4, v30
    v_lshl_add_u32 v39, v39, 7, v30
    v_and_b32 v30, 1, v0
    v_lshl_add_u32 v39, v30, 3, v39
    v_add_u32 v39, {OA}, v39
    s_lshl_b32 s62, s4, 16
    s_add_u32 s62, s62, {OBUF}
    s_lshl_b32 s63, s60, 13
    s_lshl_b32 s64, s5, 11
    s_and_b32 s64, s64, 0x1800
    s_add_u32 s63, s63, s64
    s_lshl_b32 s64, s7, 8
    s_add_u32 s63, s63, s64
    s_add_u32 s63, s63, s62
    s_lshl_b32 s64, s7, 13
    s_add_u32 s62, s62, s64
    s_lshl_b32 s64, s60, 10
    s_add_u32 s62, s62, s64
    s_lshl_b32 s64, s6, 1
    s_add_u32 s64, s64, s59
    s_lshl_b32 s64, s64, 6
    s_lshl_b32 s65, s4, 3
    s_add_u32 s64, s64, s65
    s_add_u32 s64, s64, s7
    s_lshl_b32 s64, s64, 11
    s_lshr_b32 s65, s60, 1
    s_lshl_b32 s65, s65, 9
    s_add_u32 s64, s64, s65
    s_add_u32 s64, s64, {FBUF}
    v_lshlrev_b32 v36, 4, v0
    v_and_b32 v37, 2, v0
    v_cmp_ne_u32 s[66:67], 0, v37
    v_mov_b32 v58, s40
    v_mov_b32 v59, s41''')
    for ks in range(8):
        if ks==4:
            spin(F_PROG,216,'v2','v19',sleep=8 if 'slp' in opts else 1)
            STAMP(1)
            for h in range(3):
                for T in range(2):
                    b=96+(h*2+T)*4
                    AA(f'ds_read_b64_tr_b16 v[{b}:{b+1}], v10 offset:{h*8192+T*32}\nds_read_b64_tr_b16 v[{b+2}:{b+3}], v10 offset:{h*8192+T*32+1024}')
        spin(F_PROG,(128 if ks<4 else 152)+16*(ks+1),'v2','v19',sleep=(8 if 'slp' in opts else 1 if ks<6 else 0))
        if ks==7: AA('s_setprio 3'); STAMP(5)
        a0,a1=(15,16) if ks<4 else (32,33)
        o=(ks&3)*16384
        AA(f'''ds_read_b64_tr_b16 v[40:41], v{a0} offset:{o}
        ds_read_b64_tr_b16 v[42:43], v{a0} offset:{o+8192}
        ds_read_b64_tr_b16 v[44:45], v{a1} offset:{o}
        ds_read_b64_tr_b16 v[46:47], v{a1} offset:{o+8192}
        s_waitcnt lgkmcnt(2)
        v_mfma_f32_16x16x32_bf16 v[48:51], v[40:43], v[{128+4*ks}:{131+4*ks}], {'0' if ks==0 else 'v[48:51]'}
        s_waitcnt lgkmcnt(0)
        v_mfma_f32_16x16x32_bf16 v[52:55], v[44:47], v[{128+4*ks}:{131+4*ks}], {'0' if ks==0 else 'v[52:55]'}''')
    AA('s_nop 7')
    for r in range(4): AA(f'v_cndmask_b32 v{48+r}, v{48+r}, v{52+r}, s[66:67]')
    AA(f'''v_cvt_pk_bf16_f32 v56, v48, v49
    v_cvt_pk_bf16_f32 v57, v50, v51
    s_mov_b32 exec_lo, 0x000f000f
    s_mov_b32 exec_hi, 0x000f000f
    buffer_store_dwordx4 v[56:59], v34, s[44:47], s63 offen sc1
    s_mov_b64 exec, -1''')
    STAMP(6)
    if 'x3' in opts: AA('s_branch L_end')
    AA('buffer_load_dwordx4 v[60:63], v36, s[44:47], s62 offen sc1\ns_lshl_b32 s65, s59, 6\nv_lshl_add_u32 v37, v4, 4, v2\nv_add_u32 v37, s65, v37')
    spin(F_SC,1,'v2','v19',sleep=1)
    AA(f'ds_read_b128 v[24:27], v5 offset:{HB}\nds_read_b32 v23, v8 offset:{G1}')
    AA(f'ds_read_b128 v[84:87], v37 offset:{FS2}\nds_read_b128 v[88:91], v37 offset:{FS2+128}\ns_waitcnt lgkmcnt(2)')
    for T in range(2): AA(f'v_mfma_f32_16x16x32_bf16 v[{40+4*T}:{43+4*T}], v[24:27], v[{112+4*T}:{115+4*T}], 0')
    AA('buffer_load_dwordx4 v[64:67], v36, s[44:47], s62 offen sc1\ns_nop 6\nv_mul_f32 v28, v23, v40\nv_mul_f32 v29, v23, v44')
    A('L_po:')
    AA(f'''s_waitcnt vmcnt(1)
    v_cmp_ne_u64 vcc, s[40:41], v[62:63]
    s_cbranch_vccz L_pk
    buffer_load_dwordx4 v[60:63], v36, s[44:47], s62 offen sc1
    s_sub_u32 s43, s43, 16
    s_cbranch_scc1 L_end
    s_waitcnt vmcnt(1)
    v_cmp_ne_u64 vcc, s[40:41], v[66:67]
    s_cbranch_vccz L_pk2
    buffer_load_dwordx4 v[64:67], v36, s[44:47], s62 offen sc1
    s_branch L_po
    L_pk2:
    ds_write_b64 v39, v[64:65]
    s_branch L_pk3
    L_pk:
    ds_write_b64 v39, v[60:61]
    L_pk3:''')
    ldsadd(F_O,'v2','v1')
    spin(F_O,8,'v2','v19')
    AA('ds_read_b128 v[48:51], v35\nds_read_b128 v[68:71], v38\ns_waitcnt lgkmcnt(0)')
    STAMP(7)
    AA('s_setprio 3')
    for T in range(2): AA(f'v_mfma_f32_16x16x32_bf16 v[{76+4*T}:{79+4*T}], v[48:51], v[{96+4*T}:{99+4*T}], 0')
    for T in range(2): AA(f'v_mfma_f32_16x16x32_bf16 v[{112+4*T}:{115+4*T}], v[68:71], v[{104+4*T}:{107+4*T}], 0')
    AA('s_nop 4')
    for r in range(4): AA(f'v_fmac_f32 v28, v{84+r}, v{76+r}\nv_fmac_f32 v29, v{84+r}, v{80+r}')
    AA('v_mul_f32 v76, v88, v112\nv_mul_f32 v80, v88, v116')
    for r in range(1,4): AA(f'v_fmac_f32 v76, v{88+r}, v{112+r}\nv_fmac_f32 v80, v{88+r}, v{116+r}')
    AA(f'''v_add_f32 v76, v76, v28
    v_add_f32 v80, v80, v29
    s_nop 1
    v_permlane16_swap_b32 v76, v80
    v_add_f32 v56, v76, v80
    v_add_f32 v57, v76, v80
    s_nop 1
    v_permlane32_swap_b32 v56, v57
    s_mov_b32 exec_hi, 0
    buffer_store_dwordx4 v[56:59], v36, s[44:47], s64 offen sc1
    s_mov_b64 exec, 1
    ds_add_u32 v2, v1 offset:{F_H2}''')
    STAMP(8)
    A('L_end:')
    for o in opts:
        if o.startswith('pad'):
            AA(f'''s_cmp_lg_u32 s2, 0
            s_cbranch_scc1 L_nopad
            L_pad:
            s_memrealtime s[98:99]
            s_waitcnt lgkmcnt(0)
            s_sub_u32 s60, s98, s68
            s_cmp_lt_u32 s60, {int(o[3:])*100}
            s_cbranch_scc1 L_pad
            L_nopad:''')
    dump_stamps(16)
    A('L_exit:')
    AA('s_endpgm')
    A(f'''.section .rodata,"a"
.p2align 6
.amdhsa_kernel {NAME}_kernel
  .amdhsa_next_free_vgpr 160
  .amdhsa_next_free_sgpr 102
  .amdhsa_accum_offset 160
  .amdhsa_group_segment_fixed_size 0
  .amdhsa_kernarg_size 96
  .amdhsa_user_sgpr_count 2
  .amdhsa_user_sgpr_kernarg_segment_ptr 1
  .amdhsa_system_sgpr_workgroup_id_x 1
.end_amdhsa_kernel''')
    return '\n'.join(L)+'\n'

def build_dbg(name, **kw):
    sys.path.insert(0,'cdna_kernels')
    s=gen(debug=True,**kw)
    s+=f'''.amdgpu_metadata
---
amdhsa.version: [1, 2]
amdhsa.kernels:
  - .name: {NAME}_kernel
    .symbol: {NAME}_kernel.kd
    .kernarg_segment_size: 96
    .kernarg_segment_align: 8
    .group_segment_fixed_size: 0
    .private_segment_fixed_size: 0
    .wavefront_size: 64
    .sgpr_count: 102
    .vgpr_count: 160
    .max_flat_workgroup_size: 640
    .args:
      - {{.name: kernargs, .size: 96, .offset: 0, .value_kind: by_value}}
...
.end_amdgpu_metadata
'''
    p='bench/'+name
    open(p+'.s','w').write(s)
    r=subprocess.run(['clang','-x','assembler','-target','amdgcn-amd-amdhsa','-mcpu=gfx950',p+'.s','-o',p+'.co'],capture_output=True,text=True)
    if r.returncode: print(r.stderr[:1500]); sys.exit(1)
    return f'./host {name}.co {NAME}_kernel 256 640 163840 15 16 2560 1 1 > {name}.txt'
if __name__=='__main__':
    open('cdna_kernels/'+NAME+'.s','w').write(gen())
```

```python
import sys, subprocess
NAME='gated_mix__sliding_block_cached__dense_activation_relu__decode'
HDR=open('cdna_kernels/'+NAME+'.s.ref').read().split('; Override launch')[0]

def gen(debug=False, WK=32, WV=32, psleep=2, ntkv=True, ntw=True, rotmul=4, qstart=72, sstart=248, fsleep=0, osleep=0, h2=8, LF='sc1', SF='sc1', LO='sc1', SO='sc1', opts=()):
    L=[]; A=L.append
    def AA(s):
        for x in s.strip().split('\n'): A('    '+x.strip())
    WQ_STG=131072; W1_STG=WQ_STG+14336
    SM=W1_STG+14336
    WO_STG=WQ_STG
    QB=0; PB=1056; MW=2112; LW=2176; MG=2240; FS=2248; G1=2256; TG=2272; GW=2816
    HB=2304; HZ=2560; F_PROG=2576; F_QH=2584; F_S1=2588; F_S2=2592; F_SC=2596; F_WS=2600; F_O=2604; F_KC=2608; F_H2=2640; F_H=2644; F_AI=2648; G0=2656; FS2=3840; OA=WQ_STG+24576
    LDS=163840
    QBUF=0x200000; HBUF=0x240000; SBUF=0x28000; OBUF=0x30000; FBUF=0x100000; WSN=0x260000
    NK=' nt' if ntkv else ''; NW=' nt' if ntw else ''
    cnt=[0]
    FF=0 if 'noffn' in opts else 14
    def lab(p): cnt[0]+=1; return f'L_{p}{cnt[0]}'
    def STAMP(k):
        if debug or 'hd' in opts: A(f'    s_memrealtime s[{68+2*k}:{69+2*k}]')
    def srd(d,p,n): AA(f's_mov_b32 s{d}, s{p}\ns_mov_b32 s{d+1}, s{p+1}\ns_mov_b32 s{d+2}, {n}\ns_mov_b32 s{d+3}, 0x20000')
    def spin(off,thr,vf,vt,sleep=0):
        l=lab('sp')
        A(l+':')
        AA(f'ds_read_b32 {vt}, {vf} offset:{off}\ns_sub_u32 s43, s43, 1\ns_cbranch_scc1 L_end')
        if sleep: AA(f's_sleep {sleep}')
        AA(f's_waitcnt lgkmcnt(0)\nv_readfirstlane_b32 s42, {vt}\ns_cmp_ge_u32 s42, {thr}\ns_cbranch_scc0 {l}')
    def ldsadd(off,vf,vone):
        AA(f's_waitcnt lgkmcnt(0)\ns_mov_b64 exec, 1\nds_add_u32 {vf}, {vone} offset:{off}\ns_mov_b64 exec, -1')
    def dpp2(op,a,b,rots):
        for r in rots:
            AA(f's_nop 0\n{op}_dpp {a}, {a}, {a} row_ror:{r} row_mask:0xf bank_mask:0xf\n{op}_dpp {b}, {b}, {b} row_ror:{r} row_mask:0xf bank_mask:0xf')
    def dump_stamps(n):
        if 'hd' in opts:
            AA('''s_memrealtime s[98:99]
            s_cmp_lg_u32 s2, 0
            s_cbranch_scc1 L_exit
            s_cmp_gt_u32 s3, 2
            s_cbranch_scc1 L_exit
            s_waitcnt lgkmcnt(0)
            s_mov_b64 exec, 1
            s_mul_i32 s60, s3, 20
            v_mov_b32 v1, s60
            s_cmp_eq_u32 s3, 0
            s_cselect_b32 s61, s72, s74
            s_cselect_b32 s62, s74, s78
            s_cselect_b32 s63, s78, s84
            s_cmp_eq_u32 s3, 2
            s_cselect_b32 s61, s74, s61
            s_cselect_b32 s62, s80, s62
            s_cselect_b32 s63, s82, s63
            s_sub_u32 s61, s61, s68
            s_sub_u32 s62, s62, s68
            s_sub_u32 s63, s63, s68
            s_sub_u32 s64, s98, s68
            v_mov_b32 v2, s68
            v_mov_b32 v3, s61
            v_mov_b32 v4, s62
            v_mov_b32 v5, s63
            v_mov_b32 v6, s64
            global_store_dword v1, v2, s[36:37]
            global_store_dword v1, v3, s[36:37] offset:4
            global_store_dword v1, v4, s[36:37] offset:8
            global_store_dword v1, v5, s[36:37] offset:12
            global_store_dword v1, v6, s[36:37] offset:16''')
            return
        if not debug: return
        AA(f'''s_waitcnt lgkmcnt(0)
        s_mul_i32 s60, s2, 10
        s_add_u32 s60, s60, s3
        s_lshl_b32 s60, s60, 7
        s_add_u32 s60, s60, 0x10000000
        s_add_u32 s60, s38, s60
        s_addc_u32 s61, s39, 0
        s_mov_b64 exec, -1
        v_mov_b32 v1, 0''')
        for k in range(16):
            AA(f'v_mov_b32 v2, s{68+2*k}\nv_mov_b32 v3, s{69+2*k}\nglobal_store_dwordx2 v1, v[2:3], s[60:61] offset:{8*k}')
    A(HDR+f'; @launch grid=(256,1,1) block=(640,1,1) lds={LDS}')
    A(f'.amdgcn_target "amdgcn-amd-amdhsa--gfx950"\n.text\n.globl {NAME}_kernel\n.p2align 8\n.type {NAME}_kernel,@function\n{NAME}_kernel:')
    if debug or 'hd' in opts:
        for k in range(1,15): AA(f's_mov_b64 s[{68+2*k}:{69+2*k}], 0')
    STAMP(0)
    AA(f'''s_cmp_ge_u32 s2, 256
    s_cbranch_scc1 L_exit
    s_load_dwordx16 s[16:31], s[0:1], 0
    s_load_dwordx8 s[32:39], s[0:1], 64
    v_lshrrev_b32 v1, 6, v0
    v_and_b32 v0, 63, v0
    v_mov_b32 v2, {SM}
    v_readfirstlane_b32 s3, v1
    v_mov_b32 v5, 0
    v_lshl_add_u32 v7, v0, 2, v2
    s_cmp_lg_u32 s3, 9
    s_cbranch_scc1 L_noinit
    ds_write_b32 v7, v5 offset:{HB}
    ds_write_b32 v7, v5 offset:{HB+256}
    s_waitcnt lgkmcnt(0)
    L_noinit:
    s_and_b32 s4, s2, 7
    s_lshr_b32 s5, s2, 3
    s_and_b32 s6, s5, 3
    s_lshr_b32 s7, s5, 2
    s_mov_b32 s43, 0x400000
    s_cmp_eq_u32 s3, 1
    s_cbranch_scc1 L_aux
    s_cmp_gt_u32 s3, 1
    s_cbranch_scc1 L_comp''')
    AA(f'''s_setprio {2 if 'ap3' in opts else 3}
    v_lshlrev_b32 v1, 4, v0
    v_lshrrev_b32 v3, 5, v0
    v_lshlrev_b32 v4, 4, v3
    v_xor_b32 v8, v1, v4
    v_lshlrev_b32 v4, 5, v3
    v_xor_b32 v16, v1, v4''')
    for i in range(1,8): AA(f'v_xor_b32 v{8+i}, {i<<5}, v8')
    for i in range(1,4): AA(f'v_xor_b32 v{16+i}, {i<<6}, v16')
    AA(f'''s_lshl_b32 s62, s6, 3
    s_add_u32 s62, s62, s4
    s_lshl_b32 s62, s62, 22
    s_lshl_b32 s63, s7, 17
    s_add_u32 s62, s62, s63
    s_add_u32 s62, s62, 0x300000
    s_mul_i32 s63, s5, {rotmul*1024}
    s_and_b32 s63, s63, 0x1ffff
    s_mov_b32 s64, 0
    s_mov_b32 s14, 0
    s_waitcnt lgkmcnt(0)''')
    srd(56,18,134217728); srd(8,20,134217728)
    def prog(W):
        AA(f's_add_u32 s64, s64, 4\\ns_sub_u32 s15, s64, {W}\\ns_max_i32 s14, s14, s15\\nv_mov_b32 v3, s14\\ns_waitcnt vmcnt({W})\\nds_write_b32 v2, v3 offset:{F_PROG}'.replace('\\n','\n'))
    AA('s_barrier')
    STAMP(1)
    def kvloop(sr,vb,per,tag,check,W,end):
        l=lab(tag); A(l+':')
        check()
        for hgrp in range(2):
            AA(f's_add_u32 s66, s62, s67\ns_add_u32 s67, s67, 4096\ns_and_b32 s67, s67, 0x1ffff')
            for k in range(4): AA(f'buffer_load_dwordx4 v{vb+(hgrp*4+k)%per}, s[{sr}:{sr+3}], s66 offen offset:{k*1024}{NK} lds')
            AA('s_add_u32 m0, m0, 4096')
            prog(W)
        AA(f's_add_u32 s65, s65, 1\ns_cmp_lt_u32 s65, {end}\ns_cbranch_scc1 {l}')
        return l
    def vcheck():
        l=lab('vc')
        AA(f's_bitcmp1_b32 s65, 0\ns_cbranch_scc1 {l}\ns_lshl_b32 s66, s65, 1\nv_add_u32 v5, s66, v2')
        spin(F_KC,1,'v5','v4')
        A(l+':')
    AA(f's_mov_b32 m0, 0\ns_mov_b32 s65, 0\ns_mov_b32 s67, s63')
    kvloop(56,8,8,'k',lambda:None,WK,16)
    STAMP(2)
    srd(48,24,3670016); srd(52,30,1605632)
    AA(f'''s_lshl_b32 s60, s4, 9
    s_lshl_b32 s61, s7, 5
    s_add_u32 s60, s60, s61
    s_mul_i32 s60, s60, 896
    s_lshl_b32 s61, s4, 3
    s_add_u32 s61, s61, s7
    s_mul_i32 s61, s61, 25088
    s_lshl_b32 s66, s6, 8
    s_add_u32 s60, s60, s66
    s_add_u32 s61, s61, s66
    v_lshrrev_b32 v3, 4, v0
    v_and_b32 v4, 15, v0
    v_mul_u32_u24 v1, 896, v3
    v_lshl_add_u32 v1, v4, 4, v1
    s_cmp_eq_u32 s6, 3
    s_cselect_b32 s66, 8, 16
    v_cmp_gt_u32 vcc, s66, v4
    v_mov_b32 v3, 0x8000000
    v_cndmask_b32 v1, v3, v1, vcc
    s_mov_b32 m0, 0
    s_mov_b32 s65, 0
    s_mov_b32 s67, s63
    s_mov_b32 s13, 16''')
    lv=kvloop(8,16,4,'v',vcheck,WV,'s13')
    STAMP(3)
    spin(F_QH if 'oldqh' in opts else F_WS,1,'v2','v4')
    AA(f's_mov_b32 m0, {WO_STG}')
    for blk,(sr,so) in enumerate(((48,'s60'),(48,'s60'),(52,'s61'))):
        l=lab('ld')
        if blk==1: AA(f's_add_u32 s60, s60, {256*896-28672}')
        AA(f's_mov_b32 s12, 2')
        A(l+':')
        for k in range(0 if 'nowo' in opts else 4): AA(f'buffer_load_dwordx4 v1, s[{sr}:{sr+3}], {so} offen{NW} lds\ns_add_u32 m0, m0, 1024\ns_add_u32 {so}, {so}, 3584')
        prog(WV)
        AA(f's_sub_u32 s12, s12, 1\ns_cmp_lg_u32 s12, 0\ns_cbranch_scc1 {l}')
    A('L_vdone:')
    STAMP(4)
    w=WV
    while w>0:
        w-=4
        if True: AA(f'v_mov_b32 v3, {280-w}\ns_waitcnt vmcnt({w})\nds_write_b32 v2, v3 offset:{F_PROG}')
    STAMP(5)
    AA('s_branch L_end')
    A('L_aux:')
    AA(f'''s_setprio {3 if 'ap3' in opts else 2}
    v_and_b32 v3, 3, v0
    v_lshrrev_b32 v4, 4, v0
    v_mul_u32_u24 v5, 896, v3
    v_lshl_add_u32 v5, v4, 4, v5
    v_lshrrev_b32 v6, 3, v0
    v_and_b32 v7, 3, v6
    v_lshlrev_b32 v7, 1, v7
    v_and_b32 v8, 7, v0
    v_xor_b32 v7, v7, v8
    v_lshlrev_b32 v7, 4, v7
    v_lshlrev_b32 v66, 4, v0
    s_and_b32 s60, s5, 7
    s_lshr_b32 s61, s5, 3
    s_mul_i32 s62, s4, 7
    s_add_u32 s62, s62, s5
    s_sub_u32 s62, s62, 16
    s_lshr_b32 s63, s62, 1
    s_and_b32 s62, s62, 1
    s_lshl_b32 s64, s4, 3
    s_add_u32 s64, s64, s60
    s_cmp_lt_u32 s5, 16
    s_cselect_b32 s61, s61, s62
    s_cselect_b32 s63, s64, s63
    s_mov_b32 s62, 3584
    s_cselect_b32 s62, 0x2000, s62
    s_cselect_b32 s65, 16, 15
    s_mul_i32 s60, s61, s62
    s_mul_i32 s60, s60, 224
    s_lshl_b32 s64, s63, 7
    s_add_u32 s60, s60, s64
    v_mul_lo_u32 v140, v6, s62
    v_add_u32 v140, v140, v7
    v_xor_b32 v141, 32, v140
    s_mov_b32 m0, {WQ_STG}
    s_mov_b32 s12, 14
    s_waitcnt lgkmcnt(0)
    s_load_dwordx2 s[40:41], s[38:39], 0''')
    srd(48,22,3670016); srd(56,28,1605632)
    AA(f"s_cmp_ge_u32 s5, {0 if 'noproj' in opts else 23}\ns_cbranch_scc1 L_pl")
    AA('s_cmp_ge_u32 s5, 16\ns_cbranch_scc1 L_pf')
    for nm,sr,st in (('L_pq',48,8192),('L_pf',56,3584)):
        A(nm+':')
        for r in (140,141): AA(f'buffer_load_dwordx4 v{r}, s[{sr}:{sr+3}], s60 offen{NW} lds\ns_add_u32 m0, m0, 1024\ns_add_u32 s60, s60, {8*st}')
        AA(f's_sub_u32 s12, s12, 1\ns_cmp_lg_u32 s12, 0\ns_cbranch_scc1 {nm}')
        if nm=='L_pq': AA('s_branch L_pl')
    A('L_pl:')
    srd(52,16,3584); srd(8,32,896); srd(44,38,WSN)
    AA('s_mul_i32 s66, s61, 448\ns_sub_u32 s67, 448, s66')
    for m in range(14):
        AA(f"buffer_load_dwordx4 v[{8+4*m}:{11+4*m}], v5, s[52:55], {'s66' if m<7 else 's67'} offen offset:{64*(m%7)}")
    AA(f'''s_mov_b32 m0, {SM+GW}
    v_lshl_add_u32 v68, v4, 4, v2
    buffer_load_dwordx4 v66, s[8:11], 0 offen lds
    s_barrier
    v_add_u32 v69, s67, v68
    v_add_u32 v68, s66, v68
    v_bfe_u32 v6, v0, 2, 2
    v_and_b32 v7, 1, v4
    v_xor_b32 v7, v7, v6
    v_lshlrev_b32 v7, 5, v7
    v_lshl_add_u32 v7, v6, 7, v7
    v_lshl_add_u32 v7, v4, 10, v7
    v_lshl_add_u32 v7, v3, 3, v7
    v_add_u32 v142, {WQ_STG}, v7
    v_xor_b32 v143, 32, v142
    v_xor_b32 v144, 64, v142
    v_xor_b32 v145, 0x60, v142
    v_lshlrev_b32 v146, s65, v3
    v_lshl_add_u32 v146, v6, 6, v146
    v_lshl_add_u32 v146, v4, 4, v146
    v_cmp_eq_u32 s[14:15], 1, v6
    v_cmp_eq_u32 s[90:91], 2, v6
    v_cmp_eq_u32 s[92:93], 3, v6
    s_lshl_b32 s60, s4, 13
    s_lshl_b32 s64, s61, 12
    s_add_u32 s60, s60, s64
    s_and_b32 s64, s63, 7
    s_lshl_b32 s64, s64, 9
    s_add_u32 s60, s60, s64
    s_add_u32 s60, s60, {QBUF}
    s_lshl_b32 s64, s61, 14
    s_lshl_b32 s63, s63, 9
    s_add_u32 s64, s64, s63
    s_add_u32 s64, s64, {HBUF}
    s_cmp_lt_u32 s5, 16
    s_cselect_b32 s60, s60, s64''')
    STAMP(1)
    AA('s_waitcnt vmcnt(0) lgkmcnt(0)\ns_add_u32 s40, s40, 1\ns_addc_u32 s41, s41, 0\nv_mov_b32 v138, s40\nv_mov_b32 v139, s41\nv_mov_b32 v85, 1')
    STAMP(2)
    AA('s_cmp_ge_u32 s5, 23\ns_cbranch_scc1 L_nop')
    for cp in range(2):
        for m in range(7):
            for c in range(2):
                b=80+(m*2+c)*4
                AA(f'ds_read_b64_tr_b16 v[{b}:{b+1}], v{142+cp*2+c} offset:{m*4096}\nds_read_b64_tr_b16 v[{b+2}:{b+3}], v{142+cp*2+c} offset:{m*4096+512}')
        for m in range(7):
            if m in (0,4,5,6): AA(f's_waitcnt lgkmcnt({ {0:12,4:8,5:4,6:0}[m] })')
            for c in range(2):
                b=80+(m*2+c)*4; d=148+(c*4) if cp==0 else 70+c*4
                AA(f"v_mfma_f32_16x16x32_bf16 v[{d}:{d+3}], v[{b}:{b+3}], v[{8+4*m}:{11+4*m}], {'0' if m==0 else f'v[{d}:{d+3}]'}")
    AA(f'v_mov_b32 v85, 1\nds_write_b32 v2, v85 offset:{F_WS}\ns_nop 4')
    for r in range(4): AA(f'v_cndmask_b32 v{148+r}, v{148+r}, v{152+r}, s[14:15]')
    for r in range(4): AA(f'v_cndmask_b32 v{148+r}, v{148+r}, v{70+r}, s[90:91]')
    for r in range(4): AA(f'v_cndmask_b32 v{148+r}, v{148+r}, v{74+r}, s[92:93]')
    AA(f'''v_mov_b32 v136, v150
    v_mov_b32 v137, v151
    v_mov_b32 v150, s40
    v_mov_b32 v151, s41
    buffer_store_dwordx4 v[148:151], v146, s[44:47], s60 offen sc1
    buffer_store_dwordx4 v[136:139], v146, s[44:47], s60 offen offset:256 sc1
    L_nop:
    ds_write_b32 v2, v85 offset:{F_WS}''')
    STAMP(3)
    if 'bare' in opts: AA('s_branch L_end')
    for m in range(14): AA(f'ds_read_b128 v[{80+4*m}:{83+4*m}], v{68 if m<7 else 69} offset:{GW+64*(m%7)}')
    AA('s_waitcnt lgkmcnt(0)')
    for m in range(14): AA(f"v_mfma_f32_16x16x32_bf16 v[76:79], v[{80+4*m}:{83+4*m}], v[{8+4*m}:{11+4*m}], {'0' if m==0 else 'v[76:79]'}")
    AA(f'''v_lshl_add_u32 v82, v3, 2, v2
    s_nop 6
    v_mov_b32 v80, v76
    v_cvt_pk_bf16_f32 v80, v80, v80
    v_lshlrev_b32 v80, 16, v80
    v_mul_f32 v80, 0xbfb8aa3b, v80
    v_exp_f32 v80, v80
    s_nop 0
    v_add_f32 v80, 1.0, v80
    v_rcp_f32 v80, v80
    s_nop 0
    v_cvt_pk_bf16_f32 v80, v80, v80
    v_lshlrev_b32 v80, 16, v80
    v_sub_f32 v81, 1.0, v80
    v_cvt_pk_bf16_f32 v81, v81, v81
    v_lshlrev_b32 v81, 16, v81
    ds_write_b32 v82, v81 offset:{G1}
    ds_write_b32 v82, v80 offset:{G0}
    ds_write_b64 v2, v[138:139] offset:{TG}
    s_lshl_b32 s60, s6, 3
    s_add_u32 s60, s60, s4
    s_lshl_b32 s62, s4, {12 if 'sl' in opts else 10}
    s_add_u32 s62, s62, {SBUF}
    s_lshl_b32 s60, s60, 13
    s_add_u32 s60, s60, {QBUF}
    s_add_u32 s63, s60, 4096
    s_lshl_b32 s61, s4, 3
    s_add_u32 s61, s61, s7
    s_mul_i32 s61, s61, 7
    v_bfe_u32 v82, v0, 1, 3
    v_min_u32 v82, 6, v82
    v_add_u32 v83, s61, v82
    v_and_b32 v84, 15, v83
    v_lshrrev_b32 v83, 4, v83
    v_lshlrev_b32 v83, 9, v83
    v_lshl_add_u32 v83, v84, 4, v83
    v_and_b32 v84, 1, v0
    v_lshl_add_u32 v83, v84, 8, v83
    v_lshl_add_u32 v83, v4, 15, v83
    v_lshl_add_u32 v82, v82, 3, v2
    v_lshl_add_u32 v82, v4, 6, v82
    v_lshl_add_u32 v82, v84, 2, v82
    v_and_b32 v84, 15, v0
    v_lshl_add_u32 v84, v84, 3, v2
    v_and_b32 v85, 1, v4
    v_lshl_add_u32 v84, v85, 2, v84
    v_lshrrev_b32 v85, 5, v0
    v_lshl_add_u32 v84, v85, 7, v84
    v_mov_b32 v85, 1
    s_mov_b32 s61, {HBUF}
    s_mov_b32 s59, {HBUF+16384}''')
    if qstart: spin(F_PROG,qstart,'v2','v86',sleep=2)
    STAMP(4)
    lp=lab('pq'); A(lp+':')
    for t in range(8): AA(f"buffer_load_dwordx4 v[{88+4*t}:{91+4*t}], v66, s[44:47], {'s60' if t<4 else 's63'} offen offset:{(t&3)*1024} sc1")
    HL='buffer_load_dwordx4 v[120:123], v83, s[44:47], s61 offen sc1\nbuffer_load_dwordx4 v[124:127], v83, s[44:47], s59 offen sc1'
    AA(HL)
    AA(f's_sub_u32 s43, s43, 16\ns_cbranch_scc1 L_end\ns_sleep {psleep}\ns_mov_b64 s[64:65], 0')
    for t in range(8): AA(f's_waitcnt vmcnt({9-t})\nv_cmp_ne_u64 vcc, s[40:41], v[{90+4*t}:{91+4*t}]\ns_or_b64 s[64:65], s[64:65], vcc')
    AA(f's_cbranch_scc1 {lp}')
    for t in range(4):
        AA(f'''v_add_f32 v{88+4*t}, v{88+4*t}, v{104+4*t}
        v_add_f32 v{89+4*t}, v{89+4*t}, v{105+4*t}
        v_cvt_pk_bf16_f32 v{88+4*t}, v{88+4*t}, v{89+4*t}
        ds_write_b32 v84, v{88+4*t} offset:{QB+(t>>1)*528+(t&1)*256}''')
    AA(f's_waitcnt lgkmcnt(0)\nds_write_b32 v2, v85 offset:{F_QH}\ns_branch L_hc\nL_hp:')
    AA(HL)
    AA(f'''s_sub_u32 s43, s43, 16
    s_cbranch_scc1 L_end
    s_sleep {psleep}
    L_hc:
    s_waitcnt vmcnt(0)
    v_cmp_ne_u64 vcc, s[40:41], v[122:123]
    v_cmp_ne_u64 s[66:67], s[40:41], v[126:127]
    s_or_b64 vcc, vcc, s[66:67]
    s_cbranch_vccnz L_hp
    v_add_f32 v120, v120, v124
    v_add_f32 v121, v121, v125
    v_max_f32 v120, 0, v120
    v_max_f32 v121, 0, v121
    v_cvt_pk_bf16_f32 v120, v120, v121
    ds_write_b32 v82, v120 offset:{HB}''')
    STAMP(5)
    if 'x1' in opts: AA('s_branch L_end')
    spin(F_S2,8,'v2','v86',sleep=1)
    STAMP(6)
    AA(f'''v_and_b32 v86, 15, v0
    v_lshl_add_u32 v87, v86, 2, v2
    v_and_b32 v88, 1, v0
    v_lshl_add_u32 v88, v88, 2, v2
    ds_read_b32 v93, v87 offset:{LW}
    ds_read_b32 v92, v88 offset:{MG}
    v_mov_b32 v94, s40
    v_mov_b32 v95, s41
    v_lshlrev_b32 v87, 4, v86
    s_lshl_b32 s63, s7, {7 if 'sl' in opts else 5}
    s_add_u32 s63, s63, s62
    s_lshl_b32 s64, s6, {10 if 'sl' in opts else 8}
    s_add_u32 s63, s63, s64
    v_lshl_add_u32 v101, v4, 2, v2
    ds_read_b32 v101, v101 offset:{G0}
    v_lshrrev_b32 v102, 1, v0
    v_lshl_add_u32 v102, v102, 2, v2
    v_and_b32 v103, 1, v0
    v_lshl_add_u32 v102, v103, 7, v102
    v_lshrrev_b32 v104, 1, v0
    v_lshlrev_b32 v104, {7 if 'sl' in opts else 5}, v104
    v_lshl_add_u32 v104, v103, 4, v104
    s_waitcnt lgkmcnt(0)''')
    for r in (8,4,2): AA(f'v_add_f32_dpp v93, v93, v93 row_ror:{r} row_mask:0xf bank_mask:0xf\ns_nop 1')
    AA(f'''s_mov_b64 exec, {'0xff' if 'sl' in opts else 3}
    buffer_store_dwordx4 v[92:95], v87, s[44:47], s63 offen sc1
    s_mov_b64 exec, -1''')
    spin(F_PROG,sstart,'v2','v86',sleep=2)
    AA('s_setprio 3')
    STAMP(9)
    lp=lab('ps'); A(lp+':')
    STAMP(10)
    AA(f'''buffer_load_dwordx4 v[96:99], v104, s[44:47], s62 offen sc1
    s_sub_u32 s43, s43, 16
    s_cbranch_scc1 L_end
    s_sleep {psleep}
    s_waitcnt vmcnt(0)
    v_cmp_ne_u64 vcc, s[40:41], v[98:99]
    s_cbranch_vccnz {lp}
    {'s_memrealtime s[94:95]' if debug else ''}
    v_mov_b32 v100, v96
    s_mov_b32 s64, 0x3db8aa3b
    s_nop 0''')
    for r in (8,4,2): AA(f'v_max_f32_dpp v100, v100, v100 row_ror:{r} row_mask:0xf bank_mask:0xf\ns_nop 1')
    AA(f'''v_sub_f32 v96, v96, v100
    v_mul_f32 v96, s64, v96
    v_exp_f32 v96, v96
    s_nop 0
    v_mul_f32 v92, v101, v96
    v_mul_f32 v96, v96, v97
    s_nop 0''')
    for r in (8,4,2): AA(f'v_add_f32_dpp v96, v96, v96 row_ror:{r} row_mask:0xf bank_mask:0xf\ns_nop 1')
    AA(f'''v_rcp_f32 v96, v96
    s_nop 0
    v_mul_f32 v92, v92, v96
    ds_write_b32 v102, v92 offset:{FS2}
    s_waitcnt lgkmcnt(0)
    ds_write_b32 v2, v85 offset:{F_SC}''')
    STAMP(7)
    if 'x2' in opts or 'x3' in opts: AA('s_branch L_end')
    AA(f'''s_cmp_lt_u32 s4, 6
    s_cselect_b32 s62, 32, 16
    s_cmp_ge_u32 s5, s62
    s_cbranch_scc1 L_end
    s_lshl_b32 s62, s4, 17
    s_lshl_b32 s63, s5, 6
    s_add_u32 s62, s62, s63
    s_add_u32 s62, s62, {FBUF}
    s_add_u32 s63, s62, 0x8000
    s_add_u32 s64, s62, 0x10000
    s_add_u32 s65, s62, 0x18000
    v_lshrrev_b32 v86, 2, v0
    v_lshlrev_b32 v86, 11, v86
    v_lshl_add_u32 v86, v3, 4, v86
    s_and_b32 s60, s2, 1
    s_mul_i32 s60, s60, 1792
    s_lshr_b32 s66, s4, 1
    s_lshl_b32 s66, s66, 8
    s_add_u32 s60, s60, s66
    s_lshl_b32 s66, s5, 3
    s_add_u32 s60, s60, s66
    v_lshlrev_b32 v87, 1, v3''')
    srd(48,34,3584)
    if 'pre' not in opts: spin(F_H2,8,'v2','v85',sleep=1)
    AA('s_mov_b64 s[52:53], -1\ns_mov_b64 s[54:55], -1\ns_mov_b64 s[56:57], -1\ns_mov_b64 s[58:59], -1')
    lp=lab('pf'); A(lp+':')
    for t in range(4): AA(f's_mov_b64 exec, s[{52+2*t}:{53+2*t}]\nbuffer_load_dwordx4 v[{88+4*t}:{91+4*t}], v86, s[44:47], s{62+t} offen {LF}')
    AA(f'''s_mov_b64 exec, -1
    s_sub_u32 s43, s43, 16
    s_cbranch_scc1 L_end
    s_sleep {fsleep}
    s_waitcnt vmcnt(0)
    v_cmp_ne_u64 s[52:53], s[40:41], v[90:91]
    v_cmp_ne_u64 s[54:55], s[40:41], v[94:95]
    v_cmp_ne_u64 s[56:57], s[40:41], v[98:99]
    v_cmp_ne_u64 s[58:59], s[40:41], v[102:103]
    s_or_b64 vcc, s[52:53], s[54:55]
    s_or_b64 s[66:67], s[58:59], s[56:57]
    s_or_b64 vcc, vcc, s[66:67]
    s_cbranch_vccz L_fd''')
    if 'free' not in opts: spin(F_H2,h2,'v2','v85',sleep=1)
    AA(f's_branch {lp}\nL_fd:')
    STAMP(8)
    AA('''v_add_f32 v88, v88, v92
    v_add_f32 v89, v89, v93
    v_add_f32 v96, v96, v100
    v_add_f32 v97, v97, v101
    v_add_f32 v88, v88, v96
    v_add_f32 v89, v89, v97''')
    dpp2('v_add_f32','v88','v89',(4,8))
    AA(f'''v_mov_b32 v90, v88
    v_mov_b32 v91, v89
    s_nop 0
    v_permlane16_swap_b32 v88, v90
    v_permlane16_swap_b32 v89, v91
    v_add_f32 v88, v88, v90
    v_add_f32 v89, v89, v91
    v_mov_b32 v90, v88
    v_mov_b32 v91, v89
    s_nop 0
    v_permlane32_swap_b32 v88, v90
    v_permlane32_swap_b32 v89, v91
    v_add_f32 v88, v88, v90
    v_add_f32 v89, v89, v91
    v_cvt_pk_bf16_f32 v88, v88, v89
    s_mov_b64 exec, 15
    buffer_store_short v88, v87, s[48:51], s60 offen
    buffer_store_short_d16_hi v88, v87, s[48:51], s60 offen offset:896
    s_cmp_lg_u32 s2, 0
    s_cbranch_scc1 L_end
    s_mov_b64 exec, 1
    v_mov_b32 v86, 0
    buffer_store_dwordx2 v[90:91], v86, s[44:47], 0 offen''' .replace('buffer_store_dwordx2 v[90:91]','v_mov_b32 v90, s40\nv_mov_b32 v91, s41\nbuffer_store_dwordx2 v[90:91]'))
    AA('s_branch L_end')
    A('L_comp:')
    AA(f'''s_sub_u32 s60, s3, 2
    v_and_b32 v3, 15, v0
    v_lshrrev_b32 v4, 4, v0
    v_mov_b32 v1, 1
    v_lshrrev_b32 v8, 2, v0
    v_and_b32 v9, 3, v0
    v_and_b32 v10, 3, v8
    v_lshl_add_u32 v10, v4, 3, v10
    v_lshlrev_b32 v10, 8, v10
    v_lshl_add_u32 v10, v9, 3, v10
    s_lshr_b32 s61, s60, 1
    s_lshl_b32 s61, s61, 6
    s_add_u32 s61, s61, {WO_STG}
    v_add_u32 v10, s61, v10
    v_xor_b32 v11, v3, v4
    v_lshlrev_b32 v11, 4, v11
    v_lshl_add_u32 v11, v3, 9, v11
    s_lshl_b32 s61, s60, 14
    v_add_u32 v11, s61, v11
    v_xor_b32 v12, 64, v11
    v_xor_b32 v13, 128, v11
    v_xor_b32 v14, 192, v11
    v_and_b32 v15, 7, v8
    v_lshlrev_b32 v15, 1, v15
    v_bfe_u32 v16, v0, 1, 1
    s_lshl_b32 s61, s60, 2
    v_add_u32 v16, s61, v16
    v_xor_b32 v15, v15, v16
    v_lshlrev_b32 v15, 4, v15
    v_lshl_add_u32 v15, v8, 9, v15
    v_and_b32 v16, 1, v0
    v_lshl_add_u32 v15, v16, 3, v15
    v_mul_u32_u24 v17, 528, v16
    v_lshl_add_u32 v17, v4, 4, v17
    v_add_u32 v17, v2, v17
    v_lshl_add_u32 v18, v16, 2, v2
    v_xor_b32 v16, 32, v15
    s_waitcnt lgkmcnt(0)''')
    srd(44,38,WSN)
    if 'tlb' in opts:
        AA(f'''s_cmp_lg_u32 s60, 7
        s_cbranch_scc1 L_notlb
        s_lshl_b32 s62, s6, 3
        s_add_u32 s62, s62, s4
        s_lshl_b32 s62, s62, 22
        s_lshl_b32 s63, s7, 17
        s_add_u32 s62, s62, s63
        s_add_u32 s62, s62, 0x300000
        s_load_dword s94, s[20:21], s62
        s_add_u32 s62, s62, 0x10000
        s_load_dword s94, s[20:21], s62
        s_load_dword s94, s[18:19], s62
        s_lshl_b32 s62, s4, 9
        s_lshl_b32 s63, s7, 5
        s_add_u32 s62, s62, s63
        s_mul_i32 s62, s62, 896
        s_load_dword s94, s[24:25], s62
        s_add_u32 s62, s62, 27776
        s_load_dword s94, s[24:25], s62
        s_add_u32 s62, s62, {256*896-27776}
        s_load_dword s94, s[24:25], s62
        s_add_u32 s62, s62, 27776
        s_load_dword s94, s[24:25], s62
        s_lshl_b32 s62, s4, 3
        s_add_u32 s62, s62, s7
        s_mul_i32 s62, s62, 25088
        s_load_dword s94, s[30:31], s62
        s_add_u32 s62, s62, 24192
        s_load_dword s94, s[30:31], s62
        s_load_dword s94, s[34:35], 0
        s_lshl_b32 s62, s4, 16
        s_add_u32 s62, s62, {OBUF}
        s_load_dword s94, s[38:39], s62
        s_lshl_b32 s62, s4, 17
        s_add_u32 s62, s62, {FBUF}
        s_load_dword s94, s[38:39], s62
        s_add_u32 s62, s62, 0x10000
        s_load_dword s94, s[38:39], s62
        s_lshl_b32 s62, s6, 18
        s_lshl_b32 s63, s4, 14
        s_add_u32 s62, s62, s63
        s_add_u32 s62, s62, {FBUF}
        s_load_dword s94, s[38:39], s62
        s_add_u32 s62, s62, 0x20000
        s_load_dword s94, s[38:39], s62
        s_lshl_b32 s62, s6, 16
        s_add_u32 s62, s62, {QBUF}
        s_load_dword s94, s[38:39], s62
        s_lshl_b32 s62, s6, 15
        s_add_u32 s62, s62, {HBUF}
        s_load_dword s94, s[38:39], s62
        s_load_dword s94, s[38:39], {SBUF}
        L_notlb:''')
    AA(f'''s_lshl_b32 s61, s60, 4
    s_add_u32 s61, s61, 16
    s_barrier
    s_setprio 1''')
    spin(F_PROG,'s61','v2','v19',sleep=2)
    STAMP(2)
    for t in range(2):
        for m in range(8):
            b=32+(t*8+m)*4
            AA(f'ds_read_b128 v[{b}:{b+3}], v{11+(m&3)} offset:{t*8192+(m>>2)*256}')
    AA(f'''s_lshl_b32 s62, s60, 2
    v_add_u32 v19, s62, v2
    s_and_b32 s59, s60, 1
    v_and_b32 v5, 7, v0
    v_cmp_eq_u32 vcc, 0, v5
    v_lshlrev_b32 v5, 4, v4
    v_lshl_add_u32 v5, v3, 3, v5
    s_lshl_b32 s58, s59, 7
    v_add_u32 v5, s58, v5
    v_mov_b32 v21, {HZ-HB}
    v_cndmask_b32 v5, v21, v5, vcc
    v_add_u32 v5, v2, v5
    v_lshrrev_b32 v8, 1, v4
    v_lshl_add_u32 v8, v8, 2, v2
    s_lshl_b32 s58, s59, 3
    v_add_u32 v8, s58, v8
    s_waitcnt lgkmcnt(0)
    ds_write_b32 v19, v1 offset:{F_KC}''')
    if 'bare' in opts: AA('s_branch L_end')
    spin(F_QH,1,'v2','v19',sleep=1)
    STAMP(3)
    AA(f'ds_read_b64 v[6:7], v2 offset:{TG}')
    for m in range(8): AA(f'ds_read_b128 v[{128+4*m}:{131+4*m}], v17 offset:{QB+m*64}')
    for m in range(8):
        AA(f's_waitcnt lgkmcnt({7-m})')
        for t in range(2):
            b=32+(t*8+m)*4; d=20+t*4
            c='0' if m==0 else f'v[{d}:{d+3}]'
            AA(f'v_mfma_f32_16x16x32_bf16 v[{d}:{d+3}], v[{128+4*m}:{131+4*m}], v[{b}:{b+3}], {c}')
    AA(f'''v_readfirstlane_b32 s40, v6
    v_readfirstlane_b32 s41, v7
    s_lshl_b32 s62, s60, 3
    v_add_u32 v19, s62, v2
    v_and_b32 v32, 7, v0
    v_lshl_add_u32 v32, v32, 3, v2
    s_mov_b32 s63, 0x3db8aa3b
    s_nop 3
    v_cvt_pk_bf16_f32 v20, v20, v21
    v_cvt_pk_bf16_f32 v24, v24, v25
    v_and_b32 v21, 0xffff0000, v20
    v_lshlrev_b32 v20, 16, v20
    v_and_b32 v25, 0xffff0000, v24
    v_lshlrev_b32 v24, 16, v24
    v_max_f32 v22, v20, v24
    v_max_f32 v23, v21, v25''')
    dpp2('v_max_f32','v22','v23',(8,4,2,1))
    AA(f'ds_write_b64 v19, v[22:23] offset:{MW}')
    ldsadd(F_S1,'v2','v1')
    spin(F_S1,8,'v2','v33')
    AA(f'ds_read_b64 v[22:23], v32 offset:{MW}\ns_waitcnt lgkmcnt(0)')
    dpp2('v_max_f32','v22','v23',(4,2,1))
    AA(f'''v_lshrrev_b32 v34, 2, v3
    v_lshlrev_b32 v34, 4, v34
    v_lshl_add_u32 v34, v9, 1, v34
    s_lshl_b32 s62, s60, 6
    v_add3_u32 v34, v34, s62, v2
    ds_write_b64 v2, v[22:23] offset:{MG}
    v_sub_f32 v20, v20, v22
    v_sub_f32 v21, v21, v23
    v_sub_f32 v24, v24, v22
    v_sub_f32 v25, v25, v23
    v_mul_f32 v20, s63, v20
    v_mul_f32 v21, s63, v21
    v_mul_f32 v24, s63, v24
    v_mul_f32 v25, s63, v25
    v_exp_f32 v20, v20
    v_exp_f32 v21, v21
    v_exp_f32 v24, v24
    v_exp_f32 v25, v25
    s_nop 0
    v_add_f32 v22, v20, v24
    v_add_f32 v23, v21, v25
    v_cvt_pk_bf16_f32 v20, v20, v21
    v_cvt_pk_bf16_f32 v24, v24, v25
    s_mov_b64 exec, 0xffff
    ds_write_b16 v34, v20 offset:{PB}
    ds_write_b16_d16_hi v34, v20 offset:{PB+528}
    ds_write_b16 v34, v24 offset:{PB+8}
    ds_write_b16_d16_hi v34, v24 offset:{PB+536}
    s_mov_b64 exec, -1''')
    dpp2('v_add_f32','v22','v23',(8,4,2,1))
    AA(f'ds_write_b64 v19, v[22:23] offset:{LW}')
    ldsadd(F_S2,'v2','v1')
    spin(F_S2,8,'v2','v33')
    STAMP(4)
    if 'x2' in opts or 'x1' in opts: AA('s_branch L_end')
    for ks in range(8): AA(f'ds_read_b128 v[{128+4*ks}:{131+4*ks}], v17 offset:{PB+ks*64}')
    AA(f'''v_add_u32 v32, 0x10000, v15
    v_add_u32 v33, 0x10000, v16
    v_and_b32 v34, 1, v0
    v_lshlrev_b32 v34, 1, v34
    v_bfe_u32 v35, v0, 1, 1
    v_add_u32 v34, v34, v35
    v_lshl_add_u32 v34, v34, 2, v4
    v_lshlrev_b32 v34, 4, v34
    v_and_b32 v35, 7, v3
    v_xor_b32 v35, v35, v4
    v_lshlrev_b32 v35, 4, v35
    v_lshl_add_u32 v35, v3, 7, v35
    s_lshl_b32 s62, s59, 11
    s_add_u32 s62, s62, {OA}
    v_add_u32 v35, s62, v35
    v_xor_b32 v38, 64, v35
    s_lshl_b32 s62, s60, 2
    v_add_u32 v39, s62, v4
    v_and_b32 v30, 7, v39
    v_lshrrev_b32 v31, 1, v3
    v_xor_b32 v30, v30, v31
    v_lshlrev_b32 v30, 4, v30
    v_lshl_add_u32 v39, v39, 7, v30
    v_and_b32 v30, 1, v0
    v_lshl_add_u32 v39, v30, 3, v39
    v_add_u32 v39, {OA}, v39
    s_lshl_b32 s62, s4, 16
    s_add_u32 s62, s62, {OBUF}
    s_lshl_b32 s63, s60, 13
    s_lshl_b32 s64, s5, 11
    s_and_b32 s64, s64, 0x1800
    s_add_u32 s63, s63, s64
    s_lshl_b32 s64, s7, 8
    s_add_u32 s63, s63, s64
    s_add_u32 s63, s63, s62
    s_lshl_b32 s64, s7, 13
    s_add_u32 s62, s62, s64
    s_lshl_b32 s64, s60, 10
    s_add_u32 s62, s62, s64
    s_lshl_b32 s64, s6, 1
    s_add_u32 s64, s64, s59
    s_lshl_b32 s64, s64, 6
    s_lshl_b32 s65, s4, 3
    s_add_u32 s64, s64, s65
    s_add_u32 s64, s64, s7
    s_lshl_b32 s64, s64, 11
    s_lshr_b32 s65, s60, 1
    s_lshl_b32 s65, s65, 9
    s_add_u32 s64, s64, s65
    s_add_u32 s64, s64, {FBUF}
    v_lshlrev_b32 v36, 4, v0
    v_and_b32 v37, 2, v0
    v_cmp_ne_u32 s[66:67], 0, v37
    v_mov_b32 v58, s40
    v_mov_b32 v59, s41''')
    for ks in range(8):
        spin(F_PROG,128+16*(ks+1),'v2','v19',sleep=(8 if 'slp' in opts else 1 if ks<6 else 0))
        if ks==7: AA('s_setprio 3'); STAMP(5)
        a0,a1=(15,16) if ks<4 else (32,33)
        o=(ks&3)*16384
        AA(f'''ds_read_b64_tr_b16 v[40:41], v{a0} offset:{o}
        ds_read_b64_tr_b16 v[42:43], v{a0} offset:{o+8192}
        ds_read_b64_tr_b16 v[44:45], v{a1} offset:{o}
        ds_read_b64_tr_b16 v[46:47], v{a1} offset:{o+8192}
        s_waitcnt lgkmcnt(2)
        v_mfma_f32_16x16x32_bf16 v[48:51], v[40:43], v[{128+4*ks}:{131+4*ks}], {'0' if ks==0 else 'v[48:51]'}
        s_waitcnt lgkmcnt(0)
        v_mfma_f32_16x16x32_bf16 v[52:55], v[44:47], v[{128+4*ks}:{131+4*ks}], {'0' if ks==0 else 'v[52:55]'}''')
    AA('s_nop 7')
    for r in range(4): AA(f'v_cndmask_b32 v{48+r}, v{48+r}, v{52+r}, s[66:67]')
    AA(f'''v_cvt_pk_bf16_f32 v56, v48, v49
    v_cvt_pk_bf16_f32 v57, v50, v51
    s_mov_b32 exec_lo, 0x000f000f
    s_mov_b32 exec_hi, 0x000f000f
    buffer_store_dwordx4 v[56:59], v34, s[44:47], s63 offen {SO}
    s_mov_b64 exec, -1''')
    STAMP(6)
    if 'x3' in opts: AA('s_branch L_end')
    AA(f'buffer_load_dwordx4 v[60:63], v36, s[44:47], s62 offen {LO}\ns_lshl_b32 s65, s59, 6\nv_lshl_add_u32 v37, v4, 4, v2\nv_add_u32 v37, s65, v37')
    AA('s_setprio 0')
    spin(F_PROG,280,'v2','v19')
    AA('s_setprio 1')
    STAMP(1)
    for h in range(3):
        for T in range(2):
            b=96+(h*2+T)*4
            AA(f'ds_read_b64_tr_b16 v[{b}:{b+1}], v10 offset:{h*8192+T*32}\nds_read_b64_tr_b16 v[{b+2}:{b+3}], v10 offset:{h*8192+T*32+1024}')
    spin(F_SC,1,'v2','v19',sleep=1)
    AA(f'ds_read_b128 v[24:27], v5 offset:{HB}\nds_read_b32 v23, v8 offset:{G1}')
    AA(f'ds_read_b128 v[84:87], v37 offset:{FS2}\nds_read_b128 v[88:91], v37 offset:{FS2+128}\ns_waitcnt lgkmcnt(2)')
    for T in range(2): AA(f'v_mfma_f32_16x16x32_bf16 v[{40+4*T}:{43+4*T}], v[24:27], v[{112+4*T}:{115+4*T}], 0')
    AA('s_nop 7\nv_mul_f32 v28, v23, v40\nv_mul_f32 v29, v23, v44\ns_branch L_pc')
    A('L_po:')
    AA(f'''s_mov_b64 exec, vcc
    buffer_load_dwordx4 v[60:63], v36, s[44:47], s62 offen {LO}
    s_mov_b64 exec, -1
    s_sub_u32 s43, s43, 16
    s_cbranch_scc1 L_end
    s_sleep {osleep}
    L_pc:
    s_waitcnt vmcnt(0)
    v_cmp_ne_u64 vcc, s[40:41], v[62:63]
    s_cbranch_vccnz L_po
    s_setprio 3
    ds_write_b64 v39, v[60:61]''')
    ldsadd(F_O,'v2','v1')
    AA('s_setprio 0')
    spin(F_O,8,'v2','v19')
    AA('s_setprio 3')
    AA('ds_read_b128 v[48:51], v35\nds_read_b128 v[68:71], v38\ns_waitcnt lgkmcnt(0)')
    STAMP(7)
    for T in range(2): AA(f'v_mfma_f32_16x16x32_bf16 v[{76+4*T}:{79+4*T}], v[48:51], v[{96+4*T}:{99+4*T}], 0')
    for T in range(2): AA(f'v_mfma_f32_16x16x32_bf16 v[{112+4*T}:{115+4*T}], v[68:71], v[{104+4*T}:{107+4*T}], 0')
    AA('s_nop 4')
    for r in range(4): AA(f'v_fmac_f32 v28, v{84+r}, v{76+r}\nv_fmac_f32 v29, v{84+r}, v{80+r}')
    AA('v_mul_f32 v76, v88, v112\nv_mul_f32 v80, v88, v116')
    for r in range(1,4): AA(f'v_fmac_f32 v76, v{88+r}, v{112+r}\nv_fmac_f32 v80, v{88+r}, v{116+r}')
    AA(f'''v_add_f32 v76, v76, v28
    v_add_f32 v80, v80, v29
    s_nop 1
    v_permlane16_swap_b32 v76, v80
    v_add_f32 v56, v76, v80
    v_add_f32 v57, v76, v80
    s_nop 1
    v_permlane32_swap_b32 v56, v57
    s_mov_b32 exec_hi, 0
    buffer_store_dwordx4 v[56:59], v36, s[44:47], s64 offen {SF}
    s_mov_b64 exec, 1
    ds_add_u32 v2, v1 offset:{F_H2}''')
    STAMP(8)
    A('L_end:')
    for o in opts:
        if o.startswith('pad'):
            AA(f'''s_cmp_lg_u32 s2, 0
            s_cbranch_scc1 L_nopad
            L_pad:
            s_memrealtime s[98:99]
            s_waitcnt lgkmcnt(0)
            s_sub_u32 s60, s98, s68
            s_cmp_lt_u32 s60, {int(o[3:])*100}
            s_cbranch_scc1 L_pad
            L_nopad:''')
    dump_stamps(16)
    A('L_exit:')
    AA('s_endpgm')
    A(f'''.section .rodata,"a"
.p2align 6
.amdhsa_kernel {NAME}_kernel
  .amdhsa_next_free_vgpr 160
  .amdhsa_next_free_sgpr 102
  .amdhsa_accum_offset 160
  .amdhsa_group_segment_fixed_size 0
  .amdhsa_kernarg_size 96
  .amdhsa_user_sgpr_count 2
  .amdhsa_user_sgpr_kernarg_segment_ptr 1
  .amdhsa_system_sgpr_workgroup_id_x 1
.end_amdhsa_kernel''')
    return '\n'.join(L)+'\n'

def build_dbg(name, **kw):
    sys.path.insert(0,'cdna_kernels')
    s=gen(debug=True,**kw)
    s+=f'''.amdgpu_metadata
---
amdhsa.version: [1, 2]
amdhsa.kernels:
  - .name: {NAME}_kernel
    .symbol: {NAME}_kernel.kd
    .kernarg_segment_size: 96
    .kernarg_segment_align: 8
    .group_segment_fixed_size: 0
    .private_segment_fixed_size: 0
    .wavefront_size: 64
    .sgpr_count: 102
    .vgpr_count: 160
    .max_flat_workgroup_size: 640
    .args:
      - {{.name: kernargs, .size: 96, .offset: 0, .value_kind: by_value}}
...
.end_amdgpu_metadata
'''
    p='bench/'+name
    open(p+'.s','w').write(s)
    r=subprocess.run(['clang','-x','assembler','-target','amdgcn-amd-amdhsa','-mcpu=gfx950',p+'.s','-o',p+'.co'],capture_output=True,text=True)
    if r.returncode: print(r.stderr[:1500]); sys.exit(1)
    return f'./host {name}.co {NAME}_kernel 256 640 163840 15 16 2560 1 1 > {name}.txt'
if __name__=='__main__':
    open('cdna_kernels/'+NAME+'.s','w').write(gen())
```

```python
import sys, subprocess
NAME='gated_mix__sliding_block_cached__dense_activation_relu__decode'
HDR=open('cdna_kernels/'+NAME+'.s.ref').read().split('; Override launch')[0]

def gen(debug=False, WK=32, WV=32, psleep=2, ntkv=True, ntw=True, rotmul=4, qstart=72, sstart=248, fsleep=0, osleep=0, h2=8, LF='sc1', SF='sc1', LO='sc1', SO='sc1', opts=()):
    L=[]; A=L.append
    def AA(s):
        for x in s.strip().split('\n'): A('    '+x.strip())
    WQ_STG=131072; W1_STG=WQ_STG+14336
    SM=W1_STG+14336
    WO_STG=WQ_STG
    QB=0; PB=1056; MW=2112; LW=2176; MG=2240; FS=2248; G1=2256; TG=2272; GW=2816
    HB=2304; HZ=2560; F_PROG=2576; F_QH=2584; F_S1=2588; F_S2=2592; F_SC=2596; F_WS=2600; F_O=2604; F_KC=2608; F_H2=2640; F_H=2644; F_AI=2648; G0=2656; FS2=3840; OA=WQ_STG+24576
    LDS=163840
    QBUF=0x200000; HBUF=0x240000; SBUF=0x28000; OBUF=0x30000; FBUF=0x100000; WSN=0x260000
    NK=' nt' if ntkv else ''; NW=' nt' if ntw else ''
    cnt=[0]
    FF=0 if 'noffn' in opts else 14
    def lab(p): cnt[0]+=1; return f'L_{p}{cnt[0]}'
    def STAMP(k):
        if debug or 'hd' in opts: A(f'    s_memrealtime s[{68+2*k}:{69+2*k}]')
    def srd(d,p,n): AA(f's_mov_b32 s{d}, s{p}\ns_mov_b32 s{d+1}, s{p+1}\ns_mov_b32 s{d+2}, {n}\ns_mov_b32 s{d+3}, 0x20000')
    def spin(off,thr,vf,vt,sleep=0):
        l=lab('sp')
        A(l+':')
        AA(f'ds_read_b32 {vt}, {vf} offset:{off}\ns_sub_u32 s43, s43, 1\ns_cbranch_scc1 L_end')
        if sleep: AA(f's_sleep {sleep}')
        AA(f's_waitcnt lgkmcnt(0)\nv_readfirstlane_b32 s42, {vt}\ns_cmp_ge_u32 s42, {thr}\ns_cbranch_scc0 {l}')
    def ldsadd(off,vf,vone):
        AA(f's_waitcnt lgkmcnt(0)\ns_mov_b64 exec, 1\nds_add_u32 {vf}, {vone} offset:{off}\ns_mov_b64 exec, -1')
    def dpp2(op,a,b,rots):
        for r in rots:
            AA(f's_nop 0\n{op}_dpp {a}, {a}, {a} row_ror:{r} row_mask:0xf bank_mask:0xf\n{op}_dpp {b}, {b}, {b} row_ror:{r} row_mask:0xf bank_mask:0xf')
    def dump_stamps(n):
        if 'hd' in opts:
            AA('''s_memrealtime s[98:99]
            s_cmp_lg_u32 s2, 0
            s_cbranch_scc1 L_exit
            s_cmp_gt_u32 s3, 2
            s_cbranch_scc1 L_exit
            s_waitcnt lgkmcnt(0)
            s_mov_b64 exec, 1
            s_mul_i32 s60, s3, 20
            v_mov_b32 v1, s60
            s_cmp_eq_u32 s3, 0
            s_cselect_b32 s61, s72, s74
            s_cselect_b32 s62, s74, s78
            s_cselect_b32 s63, s78, s84
            s_cmp_eq_u32 s3, 2
            s_cselect_b32 s61, s74, s61
            s_cselect_b32 s62, s80, s62
            s_cselect_b32 s63, s82, s63
            s_sub_u32 s61, s61, s68
            s_sub_u32 s62, s62, s68
            s_sub_u32 s63, s63, s68
            s_sub_u32 s64, s98, s68
            v_mov_b32 v2, s68
            v_mov_b32 v3, s61
            v_mov_b32 v4, s62
            v_mov_b32 v5, s63
            v_mov_b32 v6, s64
            global_store_dword v1, v2, s[36:37]
            global_store_dword v1, v3, s[36:37] offset:4
            global_store_dword v1, v4, s[36:37] offset:8
            global_store_dword v1, v5, s[36:37] offset:12
            global_store_dword v1, v6, s[36:37] offset:16''')
            return
        if not debug: return
        AA(f'''s_waitcnt lgkmcnt(0)
        s_mul_i32 s60, s2, 10
        s_add_u32 s60, s60, s3
        s_lshl_b32 s60, s60, 7
        s_add_u32 s60, s60, 0x10000000
        s_add_u32 s60, s38, s60
        s_addc_u32 s61, s39, 0
        s_mov_b64 exec, -1
        v_mov_b32 v1, 0''')
        for k in range(16):
            AA(f'v_mov_b32 v2, s{68+2*k}\nv_mov_b32 v3, s{69+2*k}\nglobal_store_dwordx2 v1, v[2:3], s[60:61] offset:{8*k}')
    A(HDR+f'; @launch grid=(256,1,1) block=(640,1,1) lds={LDS}')
    A(f'.amdgcn_target "amdgcn-amd-amdhsa--gfx950"\n.text\n.globl {NAME}_kernel\n.p2align 8\n.type {NAME}_kernel,@function\n{NAME}_kernel:')
    if debug or 'hd' in opts:
        for k in range(1,15): AA(f's_mov_b64 s[{68+2*k}:{69+2*k}], 0')
    STAMP(0)
    AA(f'''s_cmp_ge_u32 s2, 256
    s_cbranch_scc1 L_exit
    s_load_dwordx16 s[16:31], s[0:1], 0
    s_load_dwordx8 s[32:39], s[0:1], 64
    v_lshrrev_b32 v1, 6, v0
    v_and_b32 v0, 63, v0
    v_mov_b32 v2, {SM}
    v_readfirstlane_b32 s3, v1
    v_mov_b32 v5, 0
    v_lshl_add_u32 v7, v0, 2, v2
    s_cmp_lg_u32 s3, 9
    s_cbranch_scc1 L_noinit
    ds_write_b32 v7, v5 offset:{HB}
    ds_write_b32 v7, v5 offset:{HB+256}
    s_waitcnt lgkmcnt(0)
    L_noinit:
    s_and_b32 s4, s2, 7
    s_lshr_b32 s5, s2, 3
    s_and_b32 s6, s5, 3
    s_lshr_b32 s7, s5, 2
    s_mov_b32 s43, 0x400000
    s_cmp_eq_u32 s3, 1
    s_cbranch_scc1 L_aux
    s_cmp_gt_u32 s3, 1
    s_cbranch_scc1 L_comp''')
    AA(f'''s_setprio {2 if 'ap3' in opts else 3}
    v_lshlrev_b32 v1, 4, v0
    v_lshrrev_b32 v3, 5, v0
    v_lshlrev_b32 v4, 4, v3
    v_xor_b32 v8, v1, v4
    v_lshlrev_b32 v4, 5, v3
    v_xor_b32 v16, v1, v4''')
    for i in range(1,8): AA(f'v_xor_b32 v{8+i}, {i<<5}, v8')
    for i in range(1,4): AA(f'v_xor_b32 v{16+i}, {i<<6}, v16')
    AA(f'''s_lshl_b32 s62, s6, 3
    s_add_u32 s62, s62, s4
    s_lshl_b32 s62, s62, 22
    s_lshl_b32 s63, s7, 17
    s_add_u32 s62, s62, s63
    s_add_u32 s62, s62, 0x300000
    s_mul_i32 s63, s5, {rotmul*1024}
    s_and_b32 s63, s63, 0x1ffff
    s_mov_b32 s64, 0
    s_mov_b32 s14, 0
    s_waitcnt lgkmcnt(0)''')
    srd(56,18,134217728); srd(8,20,134217728)
    def prog(W):
        AA(f's_add_u32 s64, s64, 4\\ns_sub_u32 s15, s64, {W}\\ns_max_i32 s14, s14, s15\\nv_mov_b32 v3, s14\\ns_waitcnt vmcnt({W})\\nds_write_b32 v2, v3 offset:{F_PROG}'.replace('\\n','\n'))
    AA('s_barrier')
    STAMP(1)
    def kvloop(sr,vb,per,tag,check,W,end):
        l=lab(tag); A(l+':')
        check()
        for hgrp in range(2):
            AA(f's_add_u32 s66, s62, s67\ns_add_u32 s67, s67, 4096\ns_and_b32 s67, s67, 0x1ffff')
            for k in range(4): AA(f'buffer_load_dwordx4 v{vb+(hgrp*4+k)%per}, s[{sr}:{sr+3}], s66 offen offset:{k*1024}{NK} lds')
            AA('s_add_u32 m0, m0, 4096')
            prog(W)
        AA(f's_add_u32 s65, s65, 1\ns_cmp_lt_u32 s65, {end}\ns_cbranch_scc1 {l}')
        return l
    def vcheck():
        l=lab('vc')
        AA(f's_bitcmp1_b32 s65, 0\ns_cbranch_scc1 {l}\ns_lshl_b32 s66, s65, 1\nv_add_u32 v5, s66, v2')
        spin(F_KC,1,'v5','v4')
        A(l+':')
    AA(f's_mov_b32 m0, 0\ns_mov_b32 s65, 0\ns_mov_b32 s67, s63')
    kvloop(56,8,8,'k',lambda:None,WK,16)
    STAMP(2)
    srd(48,24,3670016); srd(52,30,1605632)
    AA(f'''s_lshl_b32 s60, s4, 9
    s_lshl_b32 s61, s7, 5
    s_add_u32 s60, s60, s61
    s_mul_i32 s60, s60, 896
    s_lshl_b32 s61, s4, 3
    s_add_u32 s61, s61, s7
    s_mul_i32 s61, s61, 25088
    s_lshl_b32 s66, s6, 8
    s_add_u32 s60, s60, s66
    s_add_u32 s61, s61, s66
    v_lshrrev_b32 v3, 4, v0
    v_and_b32 v4, 15, v0
    v_mul_u32_u24 v1, 896, v3
    v_lshl_add_u32 v1, v4, 4, v1
    s_cmp_eq_u32 s6, 3
    s_cselect_b32 s66, 8, 16
    v_cmp_gt_u32 vcc, s66, v4
    v_mov_b32 v3, 0x8000000
    v_cndmask_b32 v1, v3, v1, vcc
    s_mov_b32 m0, 0
    s_mov_b32 s65, 0
    s_mov_b32 s67, s63
    s_mov_b32 s13, 16''')
    lv=kvloop(8,16,4,'v',vcheck,WV,'s13')
    STAMP(3)
    spin(F_QH if 'oldqh' in opts else F_WS,1,'v2','v4')
    AA(f's_mov_b32 m0, {WO_STG}')
    for blk,(sr,so) in enumerate(((48,'s60'),(48,'s60'),(52,'s61'))):
        l=lab('ld')
        if blk==1: AA(f's_add_u32 s60, s60, {256*896-28672}')
        AA(f's_mov_b32 s12, 2')
        A(l+':')
        for k in range(0 if 'nowo' in opts else 4): AA(f'buffer_load_dwordx4 v1, s[{sr}:{sr+3}], {so} offen{NW} lds\ns_add_u32 m0, m0, 1024\ns_add_u32 {so}, {so}, 3584')
        prog(WV)
        AA(f's_sub_u32 s12, s12, 1\ns_cmp_lg_u32 s12, 0\ns_cbranch_scc1 {l}')
    A('L_vdone:')
    STAMP(4)
    w=WV
    while w>0:
        w-=4
        if True: AA(f'v_mov_b32 v3, {280-w}\ns_waitcnt vmcnt({w})\nds_write_b32 v2, v3 offset:{F_PROG}')
    STAMP(5)
    AA('s_branch L_end')
    A('L_aux:')
    AA(f'''s_setprio {3 if 'ap3' in opts else 2}
    v_and_b32 v3, 3, v0
    v_lshrrev_b32 v4, 4, v0
    v_mul_u32_u24 v5, 896, v3
    v_lshl_add_u32 v5, v4, 4, v5
    v_lshrrev_b32 v6, 3, v0
    v_and_b32 v7, 3, v6
    v_lshlrev_b32 v7, 1, v7
    v_and_b32 v8, 7, v0
    v_xor_b32 v7, v7, v8
    v_lshlrev_b32 v7, 4, v7
    v_lshlrev_b32 v66, 4, v0
    s_and_b32 s60, s5, 7
    s_lshr_b32 s61, s5, 3
    s_mul_i32 s62, s4, 7
    s_add_u32 s62, s62, s5
    s_sub_u32 s62, s62, 16
    s_lshr_b32 s63, s62, 1
    s_and_b32 s62, s62, 1
    s_lshl_b32 s64, s4, 3
    s_add_u32 s64, s64, s60
    s_cmp_lt_u32 s5, 16
    s_cselect_b32 s61, s61, s62
    s_cselect_b32 s63, s64, s63
    s_mov_b32 s62, 3584
    s_cselect_b32 s62, 0x2000, s62
    s_cselect_b32 s65, 16, 15
    s_mul_i32 s60, s61, s62
    s_mul_i32 s60, s60, 224
    s_lshl_b32 s64, s63, 7
    s_add_u32 s60, s60, s64
    v_mul_lo_u32 v140, v6, s62
    v_add_u32 v140, v140, v7
    v_xor_b32 v141, 32, v140
    s_mov_b32 m0, {WQ_STG}
    s_mov_b32 s12, 14
    s_waitcnt lgkmcnt(0)
    s_load_dwordx2 s[40:41], s[38:39], 0''')
    srd(52,16,3584)
    AA('s_mul_i32 s66, s61, 448\ns_sub_u32 s67, 448, s66')
    for m in range(7):
        AA(f"buffer_load_dwordx4 v[{8+4*m}:{11+4*m}], v5, s[52:55], s66 offen offset:{64*m}")
    srd(48,22,3670016); srd(56,28,1605632)
    AA(f"s_cmp_ge_u32 s5, {0 if 'noproj' in opts else 23}\ns_cbranch_scc1 L_pl")
    AA('s_cmp_ge_u32 s5, 16\ns_cbranch_scc1 L_pf')
    for nm,sr,st in (('L_pq',48,8192),('L_pf',56,3584)):
        A(nm+':')
        for r in (140,141): AA(f'buffer_load_dwordx4 v{r}, s[{sr}:{sr+3}], s60 offen{NW} lds\ns_add_u32 m0, m0, 1024\ns_add_u32 s60, s60, {8*st}')
        AA(f's_sub_u32 s12, s12, 1\ns_cmp_lg_u32 s12, 0\ns_cbranch_scc1 {nm}')
        if nm=='L_pq': AA('s_branch L_pl')
    A('L_pl:')
    AA('s_barrier')
    srd(8,32,896); srd(44,38,WSN)
    for m in range(7,14):
        AA(f"buffer_load_dwordx4 v[{8+4*m}:{11+4*m}], v5, s[52:55], {'s66' if m<7 else 's67'} offen offset:{64*(m%7)}")
    AA(f'''s_mov_b32 m0, {SM+GW}
    v_lshl_add_u32 v68, v4, 4, v2
    buffer_load_dwordx4 v66, s[8:11], 0 offen lds
    v_add_u32 v69, s67, v68
    v_add_u32 v68, s66, v68
    v_bfe_u32 v6, v0, 2, 2
    v_and_b32 v7, 1, v4
    v_xor_b32 v7, v7, v6
    v_lshlrev_b32 v7, 5, v7
    v_lshl_add_u32 v7, v6, 7, v7
    v_lshl_add_u32 v7, v4, 10, v7
    v_lshl_add_u32 v7, v3, 3, v7
    v_add_u32 v142, {WQ_STG}, v7
    v_xor_b32 v143, 32, v142
    v_xor_b32 v144, 64, v142
    v_xor_b32 v145, 0x60, v142
    v_lshlrev_b32 v146, s65, v3
    v_lshl_add_u32 v146, v6, 6, v146
    v_lshl_add_u32 v146, v4, 4, v146
    v_cmp_eq_u32 s[14:15], 1, v6
    v_cmp_eq_u32 s[90:91], 2, v6
    v_cmp_eq_u32 s[92:93], 3, v6
    s_lshl_b32 s60, s4, 13
    s_lshl_b32 s64, s61, 12
    s_add_u32 s60, s60, s64
    s_and_b32 s64, s63, 7
    s_lshl_b32 s64, s64, 9
    s_add_u32 s60, s60, s64
    s_add_u32 s60, s60, {QBUF}
    s_lshl_b32 s64, s61, 14
    s_lshl_b32 s63, s63, 9
    s_add_u32 s64, s64, s63
    s_add_u32 s64, s64, {HBUF}
    s_cmp_lt_u32 s5, 16
    s_cselect_b32 s60, s60, s64''')
    STAMP(1)
    AA('s_waitcnt vmcnt(8) lgkmcnt(0)\ns_add_u32 s40, s40, 1\ns_addc_u32 s41, s41, 0\nv_mov_b32 v138, s40\nv_mov_b32 v139, s41\nv_mov_b32 v85, 1')
    STAMP(2)
    AA('s_cmp_ge_u32 s5, 23\ns_cbranch_scc1 L_nop')
    for cp in range(2):
        for m in range(7):
            for c in range(2):
                b=80+(m*2+c)*4
                AA(f'ds_read_b64_tr_b16 v[{b}:{b+1}], v{142+cp*2+c} offset:{m*4096}\nds_read_b64_tr_b16 v[{b+2}:{b+3}], v{142+cp*2+c} offset:{m*4096+512}')
        for m in range(7):
            if m in (0,4,5,6): AA(f's_waitcnt lgkmcnt({ {0:12,4:8,5:4,6:0}[m] })')
            for c in range(2):
                b=80+(m*2+c)*4; d=148+(c*4) if cp==0 else 70+c*4
                AA(f"v_mfma_f32_16x16x32_bf16 v[{d}:{d+3}], v[{b}:{b+3}], v[{8+4*m}:{11+4*m}], {'0' if m==0 else f'v[{d}:{d+3}]'}")
    AA(f'v_mov_b32 v85, 1\nds_write_b32 v2, v85 offset:{F_WS}\ns_nop 4')
    for r in range(4): AA(f'v_cndmask_b32 v{148+r}, v{148+r}, v{152+r}, s[14:15]')
    for r in range(4): AA(f'v_cndmask_b32 v{148+r}, v{148+r}, v{70+r}, s[90:91]')
    for r in range(4): AA(f'v_cndmask_b32 v{148+r}, v{148+r}, v{74+r}, s[92:93]')
    AA(f'''v_mov_b32 v136, v150
    v_mov_b32 v137, v151
    v_mov_b32 v150, s40
    v_mov_b32 v151, s41
    buffer_store_dwordx4 v[148:151], v146, s[44:47], s60 offen sc1
    buffer_store_dwordx4 v[136:139], v146, s[44:47], s60 offen offset:256 sc1
    L_nop:
    ds_write_b32 v2, v85 offset:{F_WS}
    s_waitcnt vmcnt(0)''')
    STAMP(3)
    if 'bare' in opts: AA('s_branch L_end')
    for m in range(14): AA(f'ds_read_b128 v[{80+4*m}:{83+4*m}], v{68 if m<7 else 69} offset:{GW+64*(m%7)}')
    AA('s_waitcnt lgkmcnt(0)')
    for m in range(14): AA(f"v_mfma_f32_16x16x32_bf16 v[76:79], v[{80+4*m}:{83+4*m}], v[{8+4*m}:{11+4*m}], {'0' if m==0 else 'v[76:79]'}")
    AA(f'''v_lshl_add_u32 v82, v3, 2, v2
    s_nop 6
    v_mov_b32 v80, v76
    v_cvt_pk_bf16_f32 v80, v80, v80
    v_lshlrev_b32 v80, 16, v80
    v_mul_f32 v80, 0xbfb8aa3b, v80
    v_exp_f32 v80, v80
    s_nop 0
    v_add_f32 v80, 1.0, v80
    v_rcp_f32 v80, v80
    s_nop 0
    v_cvt_pk_bf16_f32 v80, v80, v80
    v_lshlrev_b32 v80, 16, v80
    v_sub_f32 v81, 1.0, v80
    v_cvt_pk_bf16_f32 v81, v81, v81
    v_lshlrev_b32 v81, 16, v81
    ds_write_b32 v82, v81 offset:{G1}
    ds_write_b32 v82, v80 offset:{G0}
    ds_write_b64 v2, v[138:139] offset:{TG}
    s_lshl_b32 s60, s6, 3
    s_add_u32 s60, s60, s4
    s_lshl_b32 s62, s4, {12 if 'sl' in opts else 10}
    s_add_u32 s62, s62, {SBUF}
    s_lshl_b32 s60, s60, 13
    s_add_u32 s60, s60, {QBUF}
    s_add_u32 s63, s60, 4096
    s_lshl_b32 s61, s4, 3
    s_add_u32 s61, s61, s7
    s_mul_i32 s61, s61, 7
    v_bfe_u32 v82, v0, 1, 3
    v_min_u32 v82, 6, v82
    v_add_u32 v83, s61, v82
    v_and_b32 v84, 15, v83
    v_lshrrev_b32 v83, 4, v83
    v_lshlrev_b32 v83, 9, v83
    v_lshl_add_u32 v83, v84, 4, v83
    v_and_b32 v84, 1, v0
    v_lshl_add_u32 v83, v84, 8, v83
    v_lshl_add_u32 v83, v4, 15, v83
    v_lshl_add_u32 v82, v82, 3, v2
    v_lshl_add_u32 v82, v4, 6, v82
    v_lshl_add_u32 v82, v84, 2, v82
    v_and_b32 v84, 15, v0
    v_lshl_add_u32 v84, v84, 3, v2
    v_and_b32 v85, 1, v4
    v_lshl_add_u32 v84, v85, 2, v84
    v_lshrrev_b32 v85, 5, v0
    v_lshl_add_u32 v84, v85, 7, v84
    v_mov_b32 v85, 1
    s_mov_b32 s61, {HBUF}
    s_mov_b32 s59, {HBUF+16384}''')
    if qstart: spin(F_PROG,qstart,'v2','v86',sleep=2)
    STAMP(4)
    lp=lab('pq'); A(lp+':')
    for t in range(8): AA(f"buffer_load_dwordx4 v[{88+4*t}:{91+4*t}], v66, s[44:47], {'s60' if t<4 else 's63'} offen offset:{(t&3)*1024} sc1")
    HL='buffer_load_dwordx4 v[120:123], v83, s[44:47], s61 offen sc1\nbuffer_load_dwordx4 v[124:127], v83, s[44:47], s59 offen sc1'
    AA(HL)
    AA(f's_sub_u32 s43, s43, 16\ns_cbranch_scc1 L_end\ns_sleep {psleep}\ns_mov_b64 s[64:65], 0')
    for t in range(8): AA(f's_waitcnt vmcnt({9-t})\nv_cmp_ne_u64 vcc, s[40:41], v[{90+4*t}:{91+4*t}]\ns_or_b64 s[64:65], s[64:65], vcc')
    AA(f's_cbranch_scc1 {lp}')
    for t in range(4):
        AA(f'''v_add_f32 v{88+4*t}, v{88+4*t}, v{104+4*t}
        v_add_f32 v{89+4*t}, v{89+4*t}, v{105+4*t}
        v_cvt_pk_bf16_f32 v{88+4*t}, v{88+4*t}, v{89+4*t}
        ds_write_b32 v84, v{88+4*t} offset:{QB+(t>>1)*528+(t&1)*256}''')
    AA(f's_waitcnt lgkmcnt(0)\nds_write_b32 v2, v85 offset:{F_QH}\ns_branch L_hc\nL_hp:')
    AA(HL)
    AA(f'''s_sub_u32 s43, s43, 16
    s_cbranch_scc1 L_end
    s_sleep {psleep}
    L_hc:
    s_waitcnt vmcnt(0)
    v_cmp_ne_u64 vcc, s[40:41], v[122:123]
    v_cmp_ne_u64 s[66:67], s[40:41], v[126:127]
    s_or_b64 vcc, vcc, s[66:67]
    s_cbranch_vccnz L_hp
    v_add_f32 v120, v120, v124
    v_add_f32 v121, v121, v125
    v_max_f32 v120, 0, v120
    v_max_f32 v121, 0, v121
    v_cvt_pk_bf16_f32 v120, v120, v121
    ds_write_b32 v82, v120 offset:{HB}''')
    STAMP(5)
    if 'x1' in opts: AA('s_branch L_end')
    spin(F_S2,8,'v2','v86',sleep=1)
    STAMP(6)
    AA(f'''v_and_b32 v86, 15, v0
    v_lshl_add_u32 v87, v86, 2, v2
    v_and_b32 v88, 1, v0
    v_lshl_add_u32 v88, v88, 2, v2
    ds_read_b32 v93, v87 offset:{LW}
    ds_read_b32 v92, v88 offset:{MG}
    v_mov_b32 v94, s40
    v_mov_b32 v95, s41
    v_lshlrev_b32 v87, 4, v86
    s_lshl_b32 s63, s7, {7 if 'sl' in opts else 5}
    s_add_u32 s63, s63, s62
    s_lshl_b32 s64, s6, {10 if 'sl' in opts else 8}
    s_add_u32 s63, s63, s64
    v_lshl_add_u32 v101, v4, 2, v2
    ds_read_b32 v101, v101 offset:{G0}
    v_lshrrev_b32 v102, 1, v0
    v_lshl_add_u32 v102, v102, 2, v2
    v_and_b32 v103, 1, v0
    v_lshl_add_u32 v102, v103, 7, v102
    v_lshrrev_b32 v104, 1, v0
    v_lshlrev_b32 v104, {7 if 'sl' in opts else 5}, v104
    v_lshl_add_u32 v104, v103, 4, v104
    s_waitcnt lgkmcnt(0)''')
    for r in (8,4,2): AA(f'v_add_f32_dpp v93, v93, v93 row_ror:{r} row_mask:0xf bank_mask:0xf\ns_nop 1')
    AA(f'''s_mov_b64 exec, {'0xff' if 'sl' in opts else 3}
    buffer_store_dwordx4 v[92:95], v87, s[44:47], s63 offen sc1
    s_mov_b64 exec, -1''')
    spin(F_PROG,sstart,'v2','v86',sleep=2)
    AA('s_setprio 3')
    STAMP(9)
    lp=lab('ps'); A(lp+':')
    STAMP(10)
    AA(f'''buffer_load_dwordx4 v[96:99], v104, s[44:47], s62 offen sc1
    s_sub_u32 s43, s43, 16
    s_cbranch_scc1 L_end
    s_sleep {psleep}
    s_waitcnt vmcnt(0)
    v_cmp_ne_u64 vcc, s[40:41], v[98:99]
    s_cbranch_vccnz {lp}
    {'s_memrealtime s[94:95]' if debug else ''}
    v_mov_b32 v100, v96
    s_mov_b32 s64, 0x3db8aa3b
    s_nop 0''')
    for r in (8,4,2): AA(f'v_max_f32_dpp v100, v100, v100 row_ror:{r} row_mask:0xf bank_mask:0xf\ns_nop 1')
    AA(f'''v_sub_f32 v96, v96, v100
    v_mul_f32 v96, s64, v96
    v_exp_f32 v96, v96
    s_nop 0
    v_mul_f32 v92, v101, v96
    v_mul_f32 v96, v96, v97
    s_nop 0''')
    for r in (8,4,2): AA(f'v_add_f32_dpp v96, v96, v96 row_ror:{r} row_mask:0xf bank_mask:0xf\ns_nop 1')
    AA(f'''v_rcp_f32 v96, v96
    s_nop 0
    v_mul_f32 v92, v92, v96
    ds_write_b32 v102, v92 offset:{FS2}
    s_waitcnt lgkmcnt(0)
    ds_write_b32 v2, v85 offset:{F_SC}''')
    STAMP(7)
    if 'x2' in opts or 'x3' in opts: AA('s_branch L_end')
    AA(f'''s_cmp_lt_u32 s4, 6
    s_cselect_b32 s62, 32, 16
    s_cmp_ge_u32 s5, s62
    s_cbranch_scc1 L_end
    s_lshl_b32 s62, s4, 17
    s_lshl_b32 s63, s5, 6
    s_add_u32 s62, s62, s63
    s_add_u32 s62, s62, {FBUF}
    s_add_u32 s63, s62, 0x8000
    s_add_u32 s64, s62, 0x10000
    s_add_u32 s65, s62, 0x18000
    v_lshrrev_b32 v86, 2, v0
    v_lshlrev_b32 v86, 11, v86
    v_lshl_add_u32 v86, v3, 4, v86
    s_and_b32 s60, s2, 1
    s_mul_i32 s60, s60, 1792
    s_lshr_b32 s66, s4, 1
    s_lshl_b32 s66, s66, 8
    s_add_u32 s60, s60, s66
    s_lshl_b32 s66, s5, 3
    s_add_u32 s60, s60, s66
    v_lshlrev_b32 v87, 1, v3''')
    srd(48,34,3584)
    if 'pre' not in opts: spin(F_H2,8,'v2','v85',sleep=1)
    AA('s_mov_b64 s[52:53], -1\ns_mov_b64 s[54:55], -1\ns_mov_b64 s[56:57], -1\ns_mov_b64 s[58:59], -1')
    lp=lab('pf'); A(lp+':')
    for t in range(4): AA(f's_mov_b64 exec, s[{52+2*t}:{53+2*t}]\nbuffer_load_dwordx4 v[{88+4*t}:{91+4*t}], v86, s[44:47], s{62+t} offen {LF}')
    AA(f'''s_mov_b64 exec, -1
    s_sub_u32 s43, s43, 16
    s_cbranch_scc1 L_end
    s_sleep {fsleep}
    s_waitcnt vmcnt(0)
    v_cmp_ne_u64 s[52:53], s[40:41], v[90:91]
    v_cmp_ne_u64 s[54:55], s[40:41], v[94:95]
    v_cmp_ne_u64 s[56:57], s[40:41], v[98:99]
    v_cmp_ne_u64 s[58:59], s[40:41], v[102:103]
    s_or_b64 vcc, s[52:53], s[54:55]
    s_or_b64 s[66:67], s[58:59], s[56:57]
    s_or_b64 vcc, vcc, s[66:67]
    s_cbranch_vccz L_fd''')
    if 'free' not in opts: spin(F_H2,h2,'v2','v85',sleep=1)
    AA(f's_branch {lp}\nL_fd:')
    STAMP(8)
    AA('''v_add_f32 v88, v88, v92
    v_add_f32 v89, v89, v93
    v_add_f32 v96, v96, v100
    v_add_f32 v97, v97, v101
    v_add_f32 v88, v88, v96
    v_add_f32 v89, v89, v97''')
    dpp2('v_add_f32','v88','v89',(4,8))
    AA(f'''v_mov_b32 v90, v88
    v_mov_b32 v91, v89
    s_nop 0
    v_permlane16_swap_b32 v88, v90
    v_permlane16_swap_b32 v89, v91
    v_add_f32 v88, v88, v90
    v_add_f32 v89, v89, v91
    v_mov_b32 v90, v88
    v_mov_b32 v91, v89
    s_nop 0
    v_permlane32_swap_b32 v88, v90
    v_permlane32_swap_b32 v89, v91
    v_add_f32 v88, v88, v90
    v_add_f32 v89, v89, v91
    v_cvt_pk_bf16_f32 v88, v88, v89
    s_mov_b64 exec, 15
    buffer_store_short v88, v87, s[48:51], s60 offen
    buffer_store_short_d16_hi v88, v87, s[48:51], s60 offen offset:896
    s_cmp_lg_u32 s2, 0
    s_cbranch_scc1 L_end
    s_mov_b64 exec, 1
    v_mov_b32 v86, 0
    buffer_store_dwordx2 v[90:91], v86, s[44:47], 0 offen''' .replace('buffer_store_dwordx2 v[90:91]','v_mov_b32 v90, s40\nv_mov_b32 v91, s41\nbuffer_store_dwordx2 v[90:91]'))
    AA('s_branch L_end')
    A('L_comp:')
    AA(f'''s_sub_u32 s60, s3, 2
    v_and_b32 v3, 15, v0
    v_lshrrev_b32 v4, 4, v0
    v_mov_b32 v1, 1
    v_lshrrev_b32 v8, 2, v0
    v_and_b32 v9, 3, v0
    v_and_b32 v10, 3, v8
    v_lshl_add_u32 v10, v4, 3, v10
    v_lshlrev_b32 v10, 8, v10
    v_lshl_add_u32 v10, v9, 3, v10
    s_lshr_b32 s61, s60, 1
    s_lshl_b32 s61, s61, 6
    s_add_u32 s61, s61, {WO_STG}
    v_add_u32 v10, s61, v10
    v_xor_b32 v11, v3, v4
    v_lshlrev_b32 v11, 4, v11
    v_lshl_add_u32 v11, v3, 9, v11
    s_lshl_b32 s61, s60, 14
    v_add_u32 v11, s61, v11
    v_xor_b32 v12, 64, v11
    v_xor_b32 v13, 128, v11
    v_xor_b32 v14, 192, v11
    v_and_b32 v15, 7, v8
    v_lshlrev_b32 v15, 1, v15
    v_bfe_u32 v16, v0, 1, 1
    s_lshl_b32 s61, s60, 2
    v_add_u32 v16, s61, v16
    v_xor_b32 v15, v15, v16
    v_lshlrev_b32 v15, 4, v15
    v_lshl_add_u32 v15, v8, 9, v15
    v_and_b32 v16, 1, v0
    v_lshl_add_u32 v15, v16, 3, v15
    v_mul_u32_u24 v17, 528, v16
    v_lshl_add_u32 v17, v4, 4, v17
    v_add_u32 v17, v2, v17
    v_lshl_add_u32 v18, v16, 2, v2
    v_xor_b32 v16, 32, v15
    s_waitcnt lgkmcnt(0)''')
    srd(44,38,WSN)
    if 'tlb' in opts:
        AA(f'''s_cmp_lg_u32 s60, 7
        s_cbranch_scc1 L_notlb
        s_lshl_b32 s62, s6, 3
        s_add_u32 s62, s62, s4
        s_lshl_b32 s62, s62, 22
        s_lshl_b32 s63, s7, 17
        s_add_u32 s62, s62, s63
        s_add_u32 s62, s62, 0x300000
        s_load_dword s94, s[20:21], s62
        s_add_u32 s62, s62, 0x10000
        s_load_dword s94, s[20:21], s62
        s_load_dword s94, s[18:19], s62
        s_lshl_b32 s62, s4, 9
        s_lshl_b32 s63, s7, 5
        s_add_u32 s62, s62, s63
        s_mul_i32 s62, s62, 896
        s_load_dword s94, s[24:25], s62
        s_add_u32 s62, s62, 27776
        s_load_dword s94, s[24:25], s62
        s_add_u32 s62, s62, {256*896-27776}
        s_load_dword s94, s[24:25], s62
        s_add_u32 s62, s62, 27776
        s_load_dword s94, s[24:25], s62
        s_lshl_b32 s62, s4, 3
        s_add_u32 s62, s62, s7
        s_mul_i32 s62, s62, 25088
        s_load_dword s94, s[30:31], s62
        s_add_u32 s62, s62, 24192
        s_load_dword s94, s[30:31], s62
        s_load_dword s94, s[34:35], 0
        s_lshl_b32 s62, s4, 16
        s_add_u32 s62, s62, {OBUF}
        s_load_dword s94, s[38:39], s62
        s_lshl_b32 s62, s4, 17
        s_add_u32 s62, s62, {FBUF}
        s_load_dword s94, s[38:39], s62
        s_add_u32 s62, s62, 0x10000
        s_load_dword s94, s[38:39], s62
        s_lshl_b32 s62, s6, 18
        s_lshl_b32 s63, s4, 14
        s_add_u32 s62, s62, s63
        s_add_u32 s62, s62, {FBUF}
        s_load_dword s94, s[38:39], s62
        s_add_u32 s62, s62, 0x20000
        s_load_dword s94, s[38:39], s62
        s_lshl_b32 s62, s6, 16
        s_add_u32 s62, s62, {QBUF}
        s_load_dword s94, s[38:39], s62
        s_lshl_b32 s62, s6, 15
        s_add_u32 s62, s62, {HBUF}
        s_load_dword s94, s[38:39], s62
        s_load_dword s94, s[38:39], {SBUF}
        L_notlb:''')
    AA(f'''s_lshl_b32 s61, s60, 4
    s_add_u32 s61, s61, 16
    s_barrier
    s_setprio 1''')
    spin(F_PROG,'s61','v2','v19',sleep=2)
    STAMP(2)
    for t in range(2):
        for m in range(8):
            b=32+(t*8+m)*4
            AA(f'ds_read_b128 v[{b}:{b+3}], v{11+(m&3)} offset:{t*8192+(m>>2)*256}')
    AA(f'''s_lshl_b32 s62, s60, 2
    v_add_u32 v19, s62, v2
    s_and_b32 s59, s60, 1
    v_and_b32 v5, 7, v0
    v_cmp_eq_u32 vcc, 0, v5
    v_lshlrev_b32 v5, 4, v4
    v_lshl_add_u32 v5, v3, 3, v5
    s_lshl_b32 s58, s59, 7
    v_add_u32 v5, s58, v5
    v_mov_b32 v21, {HZ-HB}
    v_cndmask_b32 v5, v21, v5, vcc
    v_add_u32 v5, v2, v5
    v_lshrrev_b32 v8, 1, v4
    v_lshl_add_u32 v8, v8, 2, v2
    s_lshl_b32 s58, s59, 3
    v_add_u32 v8, s58, v8
    s_waitcnt lgkmcnt(0)
    ds_write_b32 v19, v1 offset:{F_KC}''')
    if 'bare' in opts: AA('s_branch L_end')
    spin(F_QH,1,'v2','v19',sleep=1)
    STAMP(3)
    AA(f'ds_read_b64 v[6:7], v2 offset:{TG}')
    for m in range(8): AA(f'ds_read_b128 v[{128+4*m}:{131+4*m}], v17 offset:{QB+m*64}')
    for m in range(8):
        AA(f's_waitcnt lgkmcnt({7-m})')
        for t in range(2):
            b=32+(t*8+m)*4; d=20+t*4
            c='0' if m==0 else f'v[{d}:{d+3}]'
            AA(f'v_mfma_f32_16x16x32_bf16 v[{d}:{d+3}], v[{128+4*m}:{131+4*m}], v[{b}:{b+3}], {c}')
    AA(f'''v_readfirstlane_b32 s40, v6
    v_readfirstlane_b32 s41, v7
    s_lshl_b32 s62, s60, 3
    v_add_u32 v19, s62, v2
    v_and_b32 v32, 7, v0
    v_lshl_add_u32 v32, v32, 3, v2
    s_mov_b32 s63, 0x3db8aa3b
    s_nop 3
    v_cvt_pk_bf16_f32 v20, v20, v21
    v_cvt_pk_bf16_f32 v24, v24, v25
    v_and_b32 v21, 0xffff0000, v20
    v_lshlrev_b32 v20, 16, v20
    v_and_b32 v25, 0xffff0000, v24
    v_lshlrev_b32 v24, 16, v24
    v_max_f32 v22, v20, v24
    v_max_f32 v23, v21, v25''')
    dpp2('v_max_f32','v22','v23',(8,4,2,1))
    AA(f'ds_write_b64 v19, v[22:23] offset:{MW}')
    ldsadd(F_S1,'v2','v1')
    spin(F_S1,8,'v2','v33')
    AA(f'ds_read_b64 v[22:23], v32 offset:{MW}\ns_waitcnt lgkmcnt(0)')
    dpp2('v_max_f32','v22','v23',(4,2,1))
    AA(f'''v_lshrrev_b32 v34, 2, v3
    v_lshlrev_b32 v34, 4, v34
    v_lshl_add_u32 v34, v9, 1, v34
    s_lshl_b32 s62, s60, 6
    v_add3_u32 v34, v34, s62, v2
    ds_write_b64 v2, v[22:23] offset:{MG}
    v_sub_f32 v20, v20, v22
    v_sub_f32 v21, v21, v23
    v_sub_f32 v24, v24, v22
    v_sub_f32 v25, v25, v23
    v_mul_f32 v20, s63, v20
    v_mul_f32 v21, s63, v21
    v_mul_f32 v24, s63, v24
    v_mul_f32 v25, s63, v25
    v_exp_f32 v20, v20
    v_exp_f32 v21, v21
    v_exp_f32 v24, v24
    v_exp_f32 v25, v25
    s_nop 0
    v_add_f32 v22, v20, v24
    v_add_f32 v23, v21, v25
    v_cvt_pk_bf16_f32 v20, v20, v21
    v_cvt_pk_bf16_f32 v24, v24, v25
    s_mov_b64 exec, 0xffff
    ds_write_b16 v34, v20 offset:{PB}
    ds_write_b16_d16_hi v34, v20 offset:{PB+528}
    ds_write_b16 v34, v24 offset:{PB+8}
    ds_write_b16_d16_hi v34, v24 offset:{PB+536}
    s_mov_b64 exec, -1''')
    dpp2('v_add_f32','v22','v23',(8,4,2,1))
    AA(f'ds_write_b64 v19, v[22:23] offset:{LW}')
    ldsadd(F_S2,'v2','v1')
    spin(F_S2,8,'v2','v33')
    STAMP(4)
    if 'x2' in opts or 'x1' in opts: AA('s_branch L_end')
    for ks in range(8): AA(f'ds_read_b128 v[{128+4*ks}:{131+4*ks}], v17 offset:{PB+ks*64}')
    AA(f'''v_add_u32 v32, 0x10000, v15
    v_add_u32 v33, 0x10000, v16
    v_and_b32 v34, 1, v0
    v_lshlrev_b32 v34, 1, v34
    v_bfe_u32 v35, v0, 1, 1
    v_add_u32 v34, v34, v35
    v_lshl_add_u32 v34, v34, 2, v4
    v_lshlrev_b32 v34, 4, v34
    v_and_b32 v35, 7, v3
    v_xor_b32 v35, v35, v4
    v_lshlrev_b32 v35, 4, v35
    v_lshl_add_u32 v35, v3, 7, v35
    s_lshl_b32 s62, s59, 11
    s_add_u32 s62, s62, {OA}
    v_add_u32 v35, s62, v35
    v_xor_b32 v38, 64, v35
    s_lshl_b32 s62, s60, 2
    v_add_u32 v39, s62, v4
    v_and_b32 v30, 7, v39
    v_lshrrev_b32 v31, 1, v3
    v_xor_b32 v30, v30, v31
    v_lshlrev_b32 v30, 4, v30
    v_lshl_add_u32 v39, v39, 7, v30
    v_and_b32 v30, 1, v0
    v_lshl_add_u32 v39, v30, 3, v39
    v_add_u32 v39, {OA}, v39
    s_lshl_b32 s62, s4, 16
    s_add_u32 s62, s62, {OBUF}
    s_lshl_b32 s63, s60, 13
    s_lshl_b32 s64, s5, 11
    s_and_b32 s64, s64, 0x1800
    s_add_u32 s63, s63, s64
    s_lshl_b32 s64, s7, 8
    s_add_u32 s63, s63, s64
    s_add_u32 s63, s63, s62
    s_lshl_b32 s64, s7, 13
    s_add_u32 s62, s62, s64
    s_lshl_b32 s64, s60, 10
    s_add_u32 s62, s62, s64
    s_lshl_b32 s64, s6, 1
    s_add_u32 s64, s64, s59
    s_lshl_b32 s64, s64, 6
    s_lshl_b32 s65, s4, 3
    s_add_u32 s64, s64, s65
    s_add_u32 s64, s64, s7
    s_lshl_b32 s64, s64, 11
    s_lshr_b32 s65, s60, 1
    s_lshl_b32 s65, s65, 9
    s_add_u32 s64, s64, s65
    s_add_u32 s64, s64, {FBUF}
    v_lshlrev_b32 v36, 4, v0
    v_and_b32 v37, 2, v0
    v_cmp_ne_u32 s[66:67], 0, v37
    v_mov_b32 v58, s40
    v_mov_b32 v59, s41''')
    for ks in range(8):
        spin(F_PROG,128+16*(ks+1),'v2','v19',sleep=(8 if 'slp' in opts else 1 if ks<6 else 0))
        if ks==7: AA('s_setprio 3'); STAMP(5)
        a0,a1=(15,16) if ks<4 else (32,33)
        o=(ks&3)*16384
        AA(f'''ds_read_b64_tr_b16 v[40:41], v{a0} offset:{o}
        ds_read_b64_tr_b16 v[42:43], v{a0} offset:{o+8192}
        ds_read_b64_tr_b16 v[44:45], v{a1} offset:{o}
        ds_read_b64_tr_b16 v[46:47], v{a1} offset:{o+8192}
        s_waitcnt lgkmcnt(2)
        v_mfma_f32_16x16x32_bf16 v[48:51], v[40:43], v[{128+4*ks}:{131+4*ks}], {'0' if ks==0 else 'v[48:51]'}
        s_waitcnt lgkmcnt(0)
        v_mfma_f32_16x16x32_bf16 v[52:55], v[44:47], v[{128+4*ks}:{131+4*ks}], {'0' if ks==0 else 'v[52:55]'}''')
    AA('s_nop 7')
    for r in range(4): AA(f'v_cndmask_b32 v{48+r}, v{48+r}, v{52+r}, s[66:67]')
    AA(f'''v_cvt_pk_bf16_f32 v56, v48, v49
    v_cvt_pk_bf16_f32 v57, v50, v51
    s_mov_b32 exec_lo, 0x000f000f
    s_mov_b32 exec_hi, 0x000f000f
    buffer_store_dwordx4 v[56:59], v34, s[44:47], s63 offen {SO}
    s_mov_b64 exec, -1''')
    STAMP(6)
    if 'x3' in opts: AA('s_branch L_end')
    AA(f'buffer_load_dwordx4 v[60:63], v36, s[44:47], s62 offen {LO}\ns_lshl_b32 s65, s59, 6\nv_lshl_add_u32 v37, v4, 4, v2\nv_add_u32 v37, s65, v37')
    AA('s_setprio 0')
    spin(F_PROG,280,'v2','v19')
    AA('s_setprio 1')
    STAMP(1)
    for h in range(3):
        for T in range(2):
            b=96+(h*2+T)*4
            AA(f'ds_read_b64_tr_b16 v[{b}:{b+1}], v10 offset:{h*8192+T*32}\nds_read_b64_tr_b16 v[{b+2}:{b+3}], v10 offset:{h*8192+T*32+1024}')
    spin(F_SC,1,'v2','v19',sleep=1)
    AA(f'ds_read_b128 v[24:27], v5 offset:{HB}\nds_read_b32 v23, v8 offset:{G1}')
    AA(f'ds_read_b128 v[84:87], v37 offset:{FS2}\nds_read_b128 v[88:91], v37 offset:{FS2+128}\ns_waitcnt lgkmcnt(2)')
    for T in range(2): AA(f'v_mfma_f32_16x16x32_bf16 v[{40+4*T}:{43+4*T}], v[24:27], v[{112+4*T}:{115+4*T}], 0')
    AA('s_nop 7\nv_mul_f32 v28, v23, v40\nv_mul_f32 v29, v23, v44\ns_branch L_pc')
    A('L_po:')
    AA(f'''s_mov_b64 exec, vcc
    buffer_load_dwordx4 v[60:63], v36, s[44:47], s62 offen {LO}
    s_mov_b64 exec, -1
    s_sub_u32 s43, s43, 16
    s_cbranch_scc1 L_end
    s_sleep {osleep}
    L_pc:
    s_waitcnt vmcnt(0)
    v_cmp_ne_u64 vcc, s[40:41], v[62:63]
    s_cbranch_vccnz L_po
    s_setprio 3
    ds_write_b64 v39, v[60:61]''')
    ldsadd(F_O,'v2','v1')
    AA('s_setprio 0')
    spin(F_O,8,'v2','v19')
    AA('s_setprio 3')
    AA('ds_read_b128 v[48:51], v35\nds_read_b128 v[68:71], v38\ns_waitcnt lgkmcnt(0)')
    STAMP(7)
    for T in range(2): AA(f'v_mfma_f32_16x16x32_bf16 v[{76+4*T}:{79+4*T}], v[48:51], v[{96+4*T}:{99+4*T}], 0')
    for T in range(2): AA(f'v_mfma_f32_16x16x32_bf16 v[{112+4*T}:{115+4*T}], v[68:71], v[{104+4*T}:{107+4*T}], 0')
    AA('s_nop 4')
    for r in range(4): AA(f'v_fmac_f32 v28, v{84+r}, v{76+r}\nv_fmac_f32 v29, v{84+r}, v{80+r}')
    AA('v_mul_f32 v76, v88, v112\nv_mul_f32 v80, v88, v116')
    for r in range(1,4): AA(f'v_fmac_f32 v76, v{88+r}, v{112+r}\nv_fmac_f32 v80, v{88+r}, v{116+r}')
    AA(f'''v_add_f32 v76, v76, v28
    v_add_f32 v80, v80, v29
    s_nop 1
    v_permlane16_swap_b32 v76, v80
    v_add_f32 v56, v76, v80
    v_add_f32 v57, v76, v80
    s_nop 1
    v_permlane32_swap_b32 v56, v57
    s_mov_b32 exec_hi, 0
    buffer_store_dwordx4 v[56:59], v36, s[44:47], s64 offen {SF}
    s_mov_b64 exec, 1
    ds_add_u32 v2, v1 offset:{F_H2}''')
    STAMP(8)
    A('L_end:')
    for o in opts:
        if o.startswith('pad'):
            AA(f'''s_cmp_lg_u32 s2, 0
            s_cbranch_scc1 L_nopad
            L_pad:
            s_memrealtime s[98:99]
            s_waitcnt lgkmcnt(0)
            s_sub_u32 s60, s98, s68
            s_cmp_lt_u32 s60, {int(o[3:])*100}
            s_cbranch_scc1 L_pad
            L_nopad:''')
    dump_stamps(16)
    A('L_exit:')
    AA('s_endpgm')
    A(f'''.section .rodata,"a"
.p2align 6
.amdhsa_kernel {NAME}_kernel
  .amdhsa_next_free_vgpr 160
  .amdhsa_next_free_sgpr 102
  .amdhsa_accum_offset 160
  .amdhsa_group_segment_fixed_size 0
  .amdhsa_kernarg_size 96
  .amdhsa_user_sgpr_count 2
  .amdhsa_user_sgpr_kernarg_segment_ptr 1
  .amdhsa_system_sgpr_workgroup_id_x 1
.end_amdhsa_kernel''')
    return '\n'.join(L)+'\n'

def build_dbg(name, **kw):
    sys.path.insert(0,'cdna_kernels')
    s=gen(debug=True,**kw)
    s+=f'''.amdgpu_metadata
---
amdhsa.version: [1, 2]
amdhsa.kernels:
  - .name: {NAME}_kernel
    .symbol: {NAME}_kernel.kd
    .kernarg_segment_size: 96
    .kernarg_segment_align: 8
    .group_segment_fixed_size: 0
    .private_segment_fixed_size: 0
    .wavefront_size: 64
    .sgpr_count: 102
    .vgpr_count: 160
    .max_flat_workgroup_size: 640
    .args:
      - {{.name: kernargs, .size: 96, .offset: 0, .value_kind: by_value}}
...
.end_amdgpu_metadata
'''
    p='bench/'+name
    open(p+'.s','w').write(s)
    r=subprocess.run(['clang','-x','assembler','-target','amdgcn-amd-amdhsa','-mcpu=gfx950',p+'.s','-o',p+'.co'],capture_output=True,text=True)
    if r.returncode: print(r.stderr[:1500]); sys.exit(1)
    return f'./host {name}.co {NAME}_kernel 256 640 163840 15 16 2560 1 1 > {name}.txt'
if __name__=='__main__':
    open('cdna_kernels/'+NAME+'.s','w').write(gen())
```
